```python
import torch

def _softmax(x, axis=-1):
    return torch.softmax(x, dim=axis)
def _gelu(x):
    return torch.nn.functional.gelu(x, approximate="tanh")
def _silu(x):
    return torch.nn.functional.silu(x)
def _sigmoid(x):
    return torch.sigmoid(x)
def _layernorm(x, axis=-1, eps=1e-5):
    m = x.mean(dim=axis, keepdim=True)
    v = x.var(dim=axis, keepdim=True, unbiased=False)
    return (x - m) / torch.sqrt(v + eps)
def _scatter_add(tgt, idx, src, axis=0):
    return tgt.clone().index_add_(axis, idx, src)
def _segment_sum(src, seg, n):
    out = torch.zeros((n,) + src.shape[1:], dtype=src.dtype)
    return out.index_add_(0, seg, src)
def _pad(x, pw):
    flat = tuple(v for pair in reversed(pw) for v in pair)
    return torch.nn.functional.pad(x, flat)

kernel_name = 'concat_heads__gqa_block_cached__mha_block_cached__near_ridge'

def setup_inputs():

    _w = (lambda a: (lambda t: t.to(torch.bfloat16) if t.is_floating_point() else t)(torch.as_tensor(a)))
    def _A_setup():
        B, Sq, D = 16, 96, 576
        Hq, Hkv, Sk, Dh = 32, 16, 1024, 128
        assert Hq % Hkv == 0, (Hq, Hkv)
        return {
            "x": _w((lambda *s: torch.randn(*s, dtype=torch.bfloat16) * 0.8)(B, Sq, D)),
            "k_cache": _w((lambda *s: torch.randn(*s, dtype=torch.bfloat16) * 0.8)(B, Hkv, Sk, Dh)),
            "v_cache": _w((lambda *s: torch.randn(*s, dtype=torch.bfloat16) * 0.05)(B, Hkv, Sk, Dh)),
            "wq": _w((lambda *s: torch.randn(*s, dtype=torch.bfloat16) * 0.8)(D, Hq * Dh) * (D ** -0.5)),
            "wo": _w((lambda *s: torch.randn(*s, dtype=torch.bfloat16) * 0.05)(Hq * Dh, D) * ((Hq * Dh) ** -0.5)),
        }
    _A_in = _A_setup()

    def _B_setup():
        B, Sq, D = 16, 96, 576
        H, Sk, Dh = 32, 1024, 128
        return {
            "x": _w((lambda *s: torch.randn(*s, dtype=torch.bfloat16) * 0.8)(B, Sq, D)),
            "k_cache": _w((lambda *s: torch.randn(*s, dtype=torch.bfloat16) * 0.8)(B, H, Sk, Dh)),
            "v_cache": _w((lambda *s: torch.randn(*s, dtype=torch.bfloat16) * 0.05)(B, H, Sk, Dh)),
            "wq": _w((lambda *s: torch.randn(*s, dtype=torch.bfloat16) * 0.8)(D, H * Dh) * (D ** -0.5)),
            "wo": _w((lambda *s: torch.randn(*s, dtype=torch.bfloat16) * 0.05)(H * Dh, D) * ((H * Dh) ** -0.5)),
        }
    _B_in = _B_setup()

    return {
        "A_x": _A_in["x"],
        "A_k_cache": _A_in["k_cache"],
        "A_v_cache": _A_in["v_cache"],
        "A_wq": _A_in["wq"],
        "A_wo": _A_in["wo"],
        "B_x": _B_in["x"],
        "B_k_cache": _B_in["k_cache"],
        "B_v_cache": _B_in["v_cache"],
        "B_wq": _B_in["wq"],
        "B_wo": _B_in["wo"],
    }

def reference(A_x, A_k_cache, A_v_cache, A_wq, A_wo, B_x, B_k_cache, B_v_cache, B_wq, B_wo):
    def _A_ref(x, k_cache, v_cache, wq, wo):
        B, Sq, D = x.shape
        Hq, Dh = 32, 128
        Hkv = k_cache.shape[1]
        rep = Hq // Hkv
        q = (lambda x, *d: x.permute(*d))((x @ wq).reshape(B, Sq, Hq, Dh), 0, 2, 1, 3)
        k = (lambda x, n, axis: torch.repeat_interleave(x, n, dim=axis))(k_cache, rep, axis=1)
        v = (lambda x, n, axis: torch.repeat_interleave(x, n, dim=axis))(v_cache, rep, axis=1)
        scores = torch.einsum("bhqd,bhkd->bhqk", q, k) * (Dh ** -0.5)
        p = _softmax(scores, axis=-1)
        o = torch.einsum("bhqk,bhkd->bhqd", p, v)
        return (lambda x, *d: x.permute(*d))(o, 0, 2, 1, 3).reshape(B, Sq, Hq * Dh) @ wo

    def _B_ref(x, k_cache, v_cache, wq, wo):
        B, Sq, D = x.shape
        H, Dh = 32, 128
        q = (lambda x, *d: x.permute(*d))((x @ wq).reshape(B, Sq, H, Dh), 0, 2, 1, 3)
        scores = torch.einsum("bhqd,bhkd->bhqk", q, k_cache) * (Dh ** -0.5)
        p = _softmax(scores, axis=-1)
        o = torch.einsum("bhqk,bhkd->bhqd", p, v_cache)
        return (lambda x, *d: x.permute(*d))(o, 0, 2, 1, 3).reshape(B, Sq, H * Dh) @ wo

    a = _A_ref(A_x, A_k_cache, A_v_cache, A_wq, A_wo)
    b = _B_ref(B_x, B_k_cache, B_v_cache, B_wq, B_wo)
    return torch.concatenate([a, b], axis=-1)
```

```python
import re

TRANS = ("v_exp_f32", "v_log_f32", "v_rcp_f32", "v_rsq_f32", "v_sqrt_f32", "v_sin_f32", "v_cos_f32")
REG_RE = re.compile(r"\b([vsa])(\d+)\b|\b([vsa])\[(\d+):(\d+)\]|\b(vcc|exec|m0|scc)\b")

def regs_of(tok):
    out = set()
    for m in REG_RE.finditer(tok):
        if m.group(1):
            out.add((m.group(1), int(m.group(2))))
        elif m.group(3):
            for r in range(int(m.group(4)), int(m.group(5)) + 1):
                out.add((m.group(3), r))
        else:
            out.add((m.group(6), 0))
    return out

class Ins:
    __slots__ = ("text", "op", "kind", "w", "r", "A", "B", "C", "passes", "states", "label", "target", "wide_store_data", "lds_dma")
    def __init__(self, text):
        self.text = text
        t = text.split(";")[0].strip()
        self.label = None; self.target = None
        self.w = set(); self.r = set(); self.A = self.B = self.C = set()
        self.passes = 0; self.states = 1; self.wide_store_data = set(); self.lds_dma = False
        if t.endswith(":"):
            self.kind = "label"; self.label = t[:-1]; self.op = ""; self.states = 0
            return
        if t == "" or t.startswith("."):
            self.kind = "dir"; self.op = ""; self.states = 0
            return
        parts = t.split(None, 1)
        op = parts[0]; self.op = op
        rest = parts[1] if len(parts) > 1 else ""
        ops = [o.strip() for o in rest.split(",")] if rest else []
        R = regs_of
        if op.startswith("v_mfma"):
            self.kind = "mfma"
            self.w = R(ops[0]); self.A = R(ops[1]); self.B = R(ops[2]); self.C = R(ops[3])
            self.r = self.A | self.B | self.C
            self.passes = 8 if "32x32" in op else 4
        elif op.startswith("v_"):
            self.kind = "valu"
            if op.startswith("v_cmp"):
                self.w = R(ops[0]); self.r = set().union(*[R(o) for o in ops[1:]])
            elif op.startswith("v_permlane") and "swap" in op:
                self.w = R(ops[0]) | R(ops[1]); self.r = set(self.w)
            elif op.startswith("v_add_co") or op.startswith("v_addc_co") or op.startswith("v_sub_co"):
                self.w = R(ops[0]) | R(ops[1]); self.r = set().union(*[R(o) for o in ops[2:]])
            elif op == "v_nop":
                pass
            else:
                self.w = R(ops[0]); self.r = set().union(*[R(o) for o in ops[1:]]) if len(ops) > 1 else set()
                if op.startswith("v_fmac") or op.startswith("v_writelane"):
                    self.r |= self.w
        elif op.startswith("ds_"):
            self.kind = "ds"
            if op.startswith("ds_read") or op.startswith("ds_bpermute") or op.startswith("ds_swizzle") or "_rtn" in op:
                self.w = R(ops[0]); self.r = set().union(*[R(o) for o in ops[1:]])
            else:
                self.r = set().union(*[R(o) for o in ops])
        elif op.startswith("buffer_") or op.startswith("global_"):
            self.kind = "vmem"
            isl = re.search(r"\blds\b", rest) is not None or "_lds_" in op
            if isl:
                self.lds_dma = True
                self.r = set().union(*[R(o) for o in ops]) | {("m0", 0)}
            elif op in ("buffer_inv", "buffer_wbl2"):
                pass
            elif "load" in op:
                self.w = R(ops[0]); self.r = set().union(*[R(o) for o in ops[1:]])
            elif "atomic" in op:
                self.r = set().union(*[R(o) for o in ops])
                if re.search(r"\bsc0\b", rest): self.w = R(ops[0])
            else:
                self.r = set().union(*[R(o) for o in ops])
                if "x3" in op or "x4" in op:
                    self.wide_store_data = R(ops[0]) if op.startswith("buffer_") else R(ops[1])
        elif op.startswith("s_"):
            self.kind = "salu"
            if op == "s_nop":
                self.states = int(ops[0], 0) + 1
            elif op.startswith("s_cbranch") or op == "s_branch":
                self.kind = "branch"; self.target = ops[0]
            elif op.startswith("s_cmp") or op in ("s_waitcnt", "s_barrier", "s_endpgm", "s_setprio", "s_sleep"):
                self.r = set().union(*[R(o) for o in ops]) if ops else set()
            else:
                self.w = R(ops[0]); self.r = set().union(*[R(o) for o in ops[1:]]) if len(ops) > 1 else set()
                if "saveexec" in op: self.w |= {("exec", 0)}
        else:
            raise ValueError("unknown instruction: " + text)

def vonly(s): return {x for x in s if x[0] in ("v", "a")}
def sonly(s): return {x for x in s if x[0] in ("s", "vcc")}

def need(p, c):
    n = 0
    if p.kind == "valu":
        wv = vonly(p.w); ws = sonly(p.w)
        if c.kind == "mfma" and wv & c.r: n = max(n, 2)
        if c.kind == "valu":
            if p.op.replace("_e32", "").replace("_e64", "") in TRANS and (wv & c.r) and c.op.replace("_e32", "").replace("_e64", "") not in TRANS: n = max(n, 1)
            if c.op.startswith("v_permlane") and wv & c.r: n = max(n, 2)
            if (c.op.startswith("v_readlane") or c.op.startswith("v_readfirstlane")) and wv & c.r: n = max(n, 1)
            if ("dpp" in c.text or "row_" in c.text or "quad_perm" in c.text) and wv & c.r: n = max(n, 2)
            if ws & c.r:
                n = max(n, 4 if (c.op.startswith("v_readlane") or c.op.startswith("v_writelane")) else 2)
        if c.kind == "vmem" and ws & c.r: n = max(n, 5)
        if ("exec", 0) in p.w and c.kind in ("mfma", "valu"): n = max(n, 5)
    if p.kind == "mfma":
        big = p.passes == 8
        if c.kind == "mfma":
            if p.w & c.C:
                if not (p.w == c.C and p.op == c.op): n = max(n, 10 if big else 6)
            if p.w & (c.A | c.B): n = max(n, 12 if big else 8)
            if (p.w & c.w) and not (p.w == c.C and p.op == c.op): n = max(n, 10 if big else 6)
        elif c.kind in ("valu", "ds", "vmem"):
            if p.w & (c.r | c.w): n = max(n, 12 if big else 8)
            if c.kind == "valu" and vonly(p.C) & c.w: n = max(n, 7 if big else 3)
    if p.kind == "salu" and ("m0", 0) in p.w and c.lds_dma: n = max(n, 1)
    if p.wide_store_data and (p.wide_store_data & c.w): n = max(n, 2)
    return n

WINDOW = 14

class Asm:
    def __init__(self):
        self.ins = []
        self.uid = 0
    def __call__(self, text):
        for line in text.split("\n"):
            line = line.strip()
            if line: self.ins.append(Ins(line))
    def label(self, name): self(name + ":")
    def newlabel(self, base):
        self.uid += 1
        return f"L_{base}_{self.uid}"
    def pad(self):
        out = []
        for c in self.ins:
            if c.kind not in ("label", "dir"):
                dist = 0; req = 0
                for p in reversed(out):
                    if p.kind == "branch" and p.op == "s_branch": break
                    if p.op == "s_endpgm": break
                    nd = need(p, c)
                    if nd > dist: req = max(req, nd - dist)
                    dist += p.states
                    if dist >= WINDOW: break
                if req > 0:
                    out.append(Ins(f"s_nop {req-1}"))
            out.append(c)
        self.ins = out
        lab = {x.label: i for i, x in enumerate(out) if x.kind == "label"}
        problems = []
        for i, b in enumerate(out):
            if b.kind != "branch": continue
            t = lab[b.target]
            prods = []; d = 0
            for p in reversed(out[: i + 1]):
                prods.append((p, d)); d += p.states
                if d >= WINDOW: break
            d2 = 0
            for c in out[t:]:
                if c.kind in ("label", "dir"): continue
                for p, dp in prods:
                    nd = need(p, c)
                    if nd > dp + d2:
                        problems.append(f"branch hazard: '{p.text}' -> [{b.text}] -> '{c.text}' need {nd} have {dp+d2}")
                d2 += c.states
                if d2 >= WINDOW or (c.kind == "branch" and c.op == "s_branch") or c.op == "s_endpgm": break
        if problems:
            raise RuntimeError("\n".join(problems))
    def text(self):
        return "\n".join(("" if x.kind in ("label", "dir") else "  ") + x.text for x in self.ins) + "\n"

class Lgkm:
    def __init__(self, a):
        self.a = a; self.n = 0; self.done = 0; self.tag = {}
    def issue(self, text, tag=None):
        if self.n - self.done >= 15:
            self.a("s_waitcnt lgkmcnt(7)"); self.done = self.n - 7
        self.a(text); self.n += 1
        if tag is not None: self.tag[tag] = self.n
    def wait(self, tag):
        k = self.tag[tag]
        if k > self.done:
            self.a(f"s_waitcnt lgkmcnt({self.n - k})"); self.done = k
    def waitall(self):
        if self.n > self.done:
            self.a("s_waitcnt lgkmcnt(0)"); self.done = self.n
    def clone(self):
        o = Lgkm(self.a); o.n = self.n; o.done = self.done; o.tag = dict(self.tag); return o

def kernel_header(a, name):
    a(f".globl {name}")
    a(".p2align 8")
    a(f".type {name},@function")
    a(f"{name}:")

def kernel_desc(name, vgpr=256, sgpr=102):
    return f""".section .rodata,"a"
.p2align 6
.amdhsa_kernel {name}
  .amdhsa_next_free_vgpr {vgpr}
  .amdhsa_next_free_sgpr {sgpr}
  .amdhsa_accum_offset {(vgpr+3)//4*4}
  .amdhsa_group_segment_fixed_size 0
  .amdhsa_kernarg_size 104
  .amdhsa_user_sgpr_count 2
  .amdhsa_user_sgpr_kernarg_segment_ptr 1
  .amdhsa_system_sgpr_workgroup_id_x 1
.end_amdhsa_kernel
"""
```

```python
import sys, math
from asmgen import *
NAME = "concat_heads__gqa_block_cached__mha_block_cached__near_ridge"

TILE = 8448
SLOT = 2 * TILE
NSLOT = 5
RSZ = 163840 - NSLOT * SLOT
RING0 = RSZ
QPB = 28672
O_BYTES = 2 * 48 * 32 * 8192
DIAG_OFF = 64 << 20
CSCALE = math.log2(math.e) / math.sqrt(128.0)
import struct
def f2u(x): return struct.unpack("<I", struct.pack("<f", x))[0]

def interleave(a, items, fillers, lead=0.0):
    tot = sum(c for _, c in fillers)
    fi = 0; done = 0.0
    while fi < len(fillers) and done + fillers[fi][1] <= lead:
        a(fillers[fi][0]); done += fillers[fi][1]; fi += 1
    base = done
    n = len(items)
    for k, it in enumerate(items):
        it()
        tgt = base + (tot - base) * (k + 1) / n
        while fi < len(fillers) and done + fillers[fi][1] * 0.5 <= tgt:
            a(fillers[fi][0]); done += fillers[fi][1]; fi += 1
    while fi < len(fillers):
        a(fillers[fi][0]); fi += 1

def vr(b, n): return f"v[{b}:{b+n-1}]"

def gen_main(a, DIAG=False, SMFRAC=0.45, KPRE=6):
    kernel_header(a, "attn_kernel")
    a("s_cmp_ge_u32 s2, 256")
    a("s_cbranch_scc1 L_end")
    if DIAG: a("s_memrealtime s[80:81]")
    a("s_load_dwordx16 s[4:19], s[0:1], 0")
    a("s_load_dwordx8 s[20:27], s[0:1], 64")
    a("s_load_dwordx2 s[28:29], s[0:1], 96")
    a("v_lshrrev_b32 v1, 6, v0")
    a("v_and_b32 v250, 63, v0")
    a("v_readfirstlane_b32 s30, v1")
    a("s_and_b32 s70, s2, 7")
    a("s_lshl_b32 s70, s70, 1")
    a("s_bfe_u32 s31, s2, 0x10003")
    a("s_add_u32 s70, s70, s31")
    a("s_lshr_b32 s71, s2, 4")
    a("s_waitcnt lgkmcnt(0)")
    a("s_cmp_ge_u32 s30, 4")
    a("s_cbranch_scc1 L_gemm")

    O = 0; Q = 96; NEGM = 144; L = 156; S = [160, 184]; FR = 208
    vAK, vAV, vD, vST = 240, 241, 242, 243
    T0 = 244
    LANE = 250
    sKoff, sVoff, sW, sR, sCnt, sTHR, sKrem, sVrem = 48, 49, 50, 51, 52, 53, 54, 55
    sPH, sQB, sOB, sRow, sSL, sWR, sWend, sD = 60, 61, 62, 63, 64, 65, 66, 67
    a("s_lshl_b32 s31, s71, 4")
    a("s_add_u32 s31, s31, s70")
    a("s_lshl_b32 s72, s31, 18")
    a("s_lshl_b32 s73, s31, 19")
    a("s_add_u32 s74, s73, 0x40000")
    for (d, base, off) in ((32, 16, 73), (40, 6, 72), (42, 16, 74), (36, 18, 73), (44, 8, 72), (46, 18, 74)):
        a(f"s_add_u32 s{d}, s{base}, s{off}")
        a(f"s_addc_u32 s{d+1}, s{base+1}, 0")
        a(f"s_and_b32 s{d+1}, s{d+1}, 0xffff")
    a("s_mov_b32 s34, 0x40000"); a("s_mov_b32 s35, 0x20000")
    a("s_mov_b32 s38, 0x40000"); a("s_mov_b32 s39, 0x20000")
    a("s_mov_b32 s56, s28"); a("s_and_b32 s57, s29, 0xffff"); a(f"s_mov_b32 s58, {512<<20 if DIAG else O_BYTES}"); a("s_mov_b32 s59, 0x20000")
    a(f"s_mov_b32 s{sKoff}, 0"); a(f"s_mov_b32 s{sVoff}, 0")
    a(f"s_mov_b32 s{sKrem}, 3"); a(f"s_mov_b32 s{sVrem}, 3")
    a(f"s_mul_i32 s31, s30, 2112")
    a(f"s_add_u32 s{sW}, s31, {RING0 + SLOT}")
    a(f"s_add_u32 s{sWend}, s31, {RING0 + NSLOT*SLOT}")
    a(f"s_mov_b32 s{sSL}, {SLOT}")
    a(f"s_mov_b32 s{sWR}, {(-(NSLOT-1)*SLOT) & 0xffffffff}")
    a(f"s_mov_b32 s{sR}, 1")
    a(f"s_mov_b32 s{sTHR}, {f2u(10.0)}")
    a("s_lshl_b32 s31, s30, 11")
    a(f"v_lshlrev_b32 v{vD}, 4, v{LANE}")
    a(f"v_add_u32 v{vD}, s31, v{vD}")

    outl = []
    def dma(kpart=True, vpart=True):
        f = []
        if kpart:
            f.append((f"s_mov_b32 m0, s{sW}\nbuffer_load_dwordx4 v{vD}, s[32:35], s{sKoff} offen nt lds", 4))
            f.append((f"s_add_u32 m0, s{sW}, 32\nbuffer_load_dwordx4 v{vD}, s[32:35], s{sKoff} offen offset:1024 nt lds", 4))
        if vpart:
            f.append((f"s_add_u32 m0, s{sW}, {TILE}\nbuffer_load_dwordx4 v{vD}, s[36:39], s{sVoff} offen nt lds", 4))
            f.append((f"s_add_u32 m0, s{sW}, {TILE+32}\nbuffer_load_dwordx4 v{vD}, s[36:39], s{sVoff} offen offset:1024 nt lds", 4))
        f.append((f"s_add_u32 s{sW}, s{sW}, s{sSL}\ns_cmp_eq_u32 s{sW}, s{sWend}\ns_cselect_b32 s31, {NSLOT*SLOT}, 0\ns_sub_u32 s{sW}, s{sW}, s31", 2))
        for (on, off, srd, nx, rem) in ((kpart, sKoff, 32, 40, sKrem), (vpart, sVoff, 36, 44, sVrem)):
            if not on: continue
            lo = a.newlabel("sw"); lb = a.newlabel("swb")
            f.append((f"s_add_u32 s{off}, s{off}, 8192\ns_cmp_eq_u32 s{off}, 0x40000\ns_cbranch_scc1 {lo}\n{lb}:", 2))
            outl.append(f"""{lo}:
s_mov_b64 s[{srd}:{srd+1}], s[{nx}:{nx+1}]
s_mov_b64 s[{nx}:{nx+1}], s[{nx+2}:{nx+3}]
s_mov_b32 s{off}, 0
s_sub_u32 s{rem}, s{rem}, 1
s_cmp_eq_u32 s{rem}, 0
s_cselect_b32 s{srd+2}, 0, s{srd+2}
s_branch {lb}""")
        return f
    def emit(fl):
        for t, _ in fl: a(t)
    def adv():
        return [(f"s_add_u32 s{sR}, s{sR}, 1\ns_cmp_eq_u32 s{sR}, {NSLOT}\ns_cselect_b32 s{sD}, s{sWR}, s{sSL}\ns_cselect_b32 s{sR}, 0, s{sR}", 2),
                (f"v_add_u32 v{vAK}, s{sD}, v{vAK}", 1), (f"v_add_u32 v{vAV}, s{sD}, v{vAV}", 1)]
    def sync():
        a("s_waitcnt vmcnt(12)"); a("s_barrier")

    emit(dma(True, False)); emit(dma()); emit(dma()); emit(dma())
    a(f"v_and_b32 v1, 7, v{LANE}")
    a(f"v_mul_u32_u24 v1, 1056, v1")
    a(f"v_bfe_u32 v2, v{LANE}, 3, 1")
    a(f"v_lshl_add_u32 v1, v2, 8, v1")
    a(f"v_lshrrev_b32 v2, 4, v{LANE}")
    a(f"v_lshl_add_u32 v1, v2, 4, v1")
    a(f"v_add_u32 v{vAK}, {RING0 + SLOT}, v1")
    a(f"v_bfe_u32 v1, v{LANE}, 2, 3")
    a(f"v_mul_u32_u24 v1, 1056, v1")
    a(f"v_lshrrev_b32 v2, 5, v{LANE}")
    a(f"v_lshl_add_u32 v1, v2, 8, v1")
    a(f"v_and_b32 v2, 3, v{LANE}")
    a(f"v_lshl_add_u32 v1, v2, 3, v1")
    a(f"v_add_u32 v{vAV}, {RING0 + SLOT + TILE}, v1")
    a(f"v_lshrrev_b32 v1, 4, v{LANE}")
    a(f"v_lshlrev_b32 v1, 9, v1")
    a(f"v_and_b32 v2, 15, v{LANE}")
    a(f"v_lshl_add_u32 v{vST}, v2, 4, v1")
    for _ in range(9): a("s_barrier")
    a(f"s_mov_b32 s{sPH}, 0")
    a(f"s_lshl_b32 s{sRow}, s30, 5")
    a(f"s_lshl_b32 s31, s{sRow}, 8")
    a(f"s_add_u32 s{sQB}, s31, {QPB}")
    a("s_mul_i32 s75, s71, 96")
    a("s_lshl_b32 s31, s70, 1")
    a("s_add_u32 s75, s75, s31")
    a("s_lshl_b32 s75, s75, 13")
    a(f"s_add_u32 s{sOB}, s75, {48*32*8192}")
    sync(); emit(dma())
    def stamp(k):
        if DIAG: a(f"s_memrealtime s[{80+2*k}:{81+2*k}]")
    stamp(1)
    a("s_cmp_eq_u32 s30, 3")
    a("s_cbranch_scc1 L_idle")

    def sm_ops(NQ, Sb):
        ops = []
        for qi in range(NQ):
            s = Sb + 8 * qi; l = L + qi
            e = lambda k: (f"v_exp_f32 v{s+k}, v{s+k}", 2)
            ad = lambda k: (f"v_add_f32 v{l}, v{l}, v{s+k}", 1)
            c = lambda k: (f"v_cvt_pk_bf16_f32 v{s+k}, v{s+2*k}, v{s+2*k+1}", 1)
            ops += [e(0), e(1), e(2), ad(0), e(3), ad(1), c(0), e(4), ad(2), e(5), ad(3), c(1), e(6), ad(4), e(7), ad(5), c(2), ad(6), ad(7), c(3)]
        return ops
    def sm_split(NQ, Sb):
        ops = sm_ops(NQ, Sb); tot = sum(c for _, c in ops); acc = 0; k = 0
        while acc < tot * SMFRAC: acc += ops[k][1]; k += 1
        return ops[:k], ops[k:]
    def kread(lg, f):
        kt, j = f // 4, f % 4
        lg.issue(f"ds_read_b128 {vr(FR+4*f,4)}, v{vAK} offset:{64*j+512*kt}", ("k", f))
    def vread(lg, dt):
        lg.issue(f"ds_read_b64_tr_b16 {vr(FR+4*dt,2)}, v{vAV} offset:{32*dt}")
        lg.issue(f"ds_read_b64_tr_b16 {vr(FR+4*dt+2,2)}, v{vAV} offset:{32*dt+512}", ("v", dt))
    def qk_items(lg, NQ, Sb, czero=False, vpost=True):
        items = []
        for f in range(8):
            kt, j = f // 4, f % 4
            for qi in range(NQ):
                def it(f=f, kt=kt, j=j, qi=qi):
                    if qi == 0: lg.wait(("k", f))
                    d = vr(Sb + 8*qi + 4*kt, 4)
                    c = d if j else ("0" if czero else vr(NEGM + 4*qi, 4))
                    a(f"v_mfma_f32_16x16x32_bf16 {d}, {vr(FR+4*f,4)}, {vr(Q+16*qi+4*j,4)}, {c}")
                    if qi == NQ - 1 and vpost: vread(lg, f)
                items.append(it)
        return items
    def pv_items(lg, NQ, Pb):
        items = []
        for dt in range(8):
            for qi in range(NQ):
                def it(dt=dt, qi=qi, lg=lg):
                    lg.wait(("v", dt))
                    o = vr(O + 32*qi + 4*dt, 4)
                    a(f"v_mfma_f32_16x16x32_bf16 {o}, {vr(FR+4*dt,4)}, {vr(Pb+8*qi,4)}, {o}")
                items.append(it)
        return items
    def xlane(op, r, t):
        a(f"v_mov_b32 v{t}, v{r}")
        a(f"v_permlane16_swap_b32 v{t}, v{r}")
        a(f"{op} v{r}, v{r}, v{t}")
        a(f"v_mov_b32 v{t}, v{r}")
        a(f"v_permlane32_swap_b32 v{t}, v{r}")
        a(f"{op} v{r}, v{r}, v{t}")
    def rowmax(qi, Sb, r, t):
        s = Sb + 8*qi
        a(f"v_max3_f32 v{r}, v{s}, v{s+1}, v{s+2}")
        a(f"v_max3_f32 v{r}, v{r}, v{s+3}, v{s+4}")
        a(f"v_max3_f32 v{r}, v{r}, v{s+5}, v{s+6}")
        a(f"v_max_f32 v{r}, v{r}, v{s+7}")
        xlane("v_max_f32", r, t)

    def tick(NQ, par):
        Sc, Sp = S[par], S[1 - par]
        sync()
        lg = Lgkm(a)
        for f in range(8): kread(lg, f)
        emit(dma())
        h1c, _ = sm_split(NQ, Sc)
        _, h2p = sm_split(NQ, Sp)
        def mx(kt, first):
            vals = [Sc + 8*qi + 4*kt + r for qi in range(NQ) for r in range(4)]
            ops = []
            if first:
                ops.append((f"v_max_f32 v{T0}, v{vals[0]}, v{vals[1]}", 1)); vals = vals[2:]
            while vals:
                ops.append((f"v_max3_f32 v{T0}, v{T0}, v{vals[0]}, v{vals[1]}", 1)); vals = vals[2:]
            return ops
        interleave(a, qk_items(lg, NQ, Sc), h2p + mx(0, True), lead=12)
        pv = pv_items(lg, NQ, Sp)
        kp = KPRE * NQ // 3
        m1 = mx(1, False)
        advl = adv()
        interleave(a, pv[:kp // 2], advl)
        interleave(a, pv[kp // 2:kp], m1)
        lr = a.newlabel("rare"); lb = a.newlabel("rareb")
        a(f"v_cmp_lt_f32 vcc, s{sTHR}, v{T0}")
        a(f"s_cbranch_vccnz {lr}")
        lg2 = lg.clone()
        interleave(a, pv[kp:], h1c)
        a.label(lb)
        def rare():
            a.label(lr)
            a("s_waitcnt lgkmcnt(0)")
            lg2.done = lg2.n
            for it in pv_items(lg2, NQ, Sp)[kp:]: it()
            a("s_nop 7")
            for qi in range(NQ):
                r, t = T0, T0 + 1
                rowmax(qi, Sc, r, t)
                a(f"v_max_f32 v{r}, 0, v{r}")
                for k in range(4): a(f"v_sub_f32 v{NEGM+4*qi+k}, v{NEGM+4*qi+k}, v{r}")
                for k in range(8): a(f"v_sub_f32 v{Sc+8*qi+k}, v{Sc+8*qi+k}, v{r}")
                a(f"v_sub_f32 v{t}, 0, v{r}")
                a(f"v_exp_f32 v{t}, v{t}")
                a(f"v_mul_f32 v{L+qi}, v{L+qi}, v{t}")
                for k in range(32): a(f"v_mul_f32 v{O+32*qi+k}, v{O+32*qi+k}, v{t}")
            emit(h1c)
            a("s_nop 1")
            a(f"s_branch {lb}")
        rares.append(rare)

    def qread(lg, NQ):
        a(f"v_and_b32 v{T0+4}, 15, v{LANE}")
        a(f"v_lshrrev_b32 v{T0+5}, 4, v{LANE}")
        for j in range(4):
            a(f"v_add_u32 v{T0+j}, {4*j}, v{T0+5}")
            a(f"v_xor_b32 v{T0+j}, v{T0+j}, v{T0+4}")
            a(f"v_lshlrev_b32 v{T0+j}, 4, v{T0+j}")
            a(f"v_lshl_add_u32 v{T0+j}, v{T0+4}, 8, v{T0+j}")
            a(f"v_add_u32 v{T0+j}, s{sQB}, v{T0+j}")
        for qi in range(NQ):
            for j in range(4):
                lg.issue(f"ds_read_b128 {vr(Q+16*qi+4*j,4)}, v{T0+j} offset:{4096*qi}")
    def pro(NQ):
        lg = Lgkm(a)
        qread(lg, NQ)
        for f in range(8): kread(lg, f)
        z = [(f"v_mov_b32 v{O+k}, 0", 1) for k in range(32 * NQ)] + [(f"v_mov_b32 v{L+qi}, 0", 1) for qi in range(NQ)]
        interleave(a, qk_items(lg, NQ, S[0], czero=True, vpost=False), z, lead=30)
        emit(adv())
        for qi in range(NQ):
            r, t = T0, T0 + 1
            rowmax(qi, S[0], r, t)
            for k in range(4): a(f"v_sub_f32 v{NEGM+4*qi+k}, 0, v{r}")
            for k in range(8): a(f"v_sub_f32 v{S[0]+8*qi+k}, v{S[0]+8*qi+k}, v{r}")
        emit(sm_split(NQ, S[0])[0])
    def fin(NQ):
        lg = Lgkm(a)
        for dt in range(8): vread(lg, dt)
        emit(sm_split(NQ, S[1])[1])
        for it in pv_items(lg, NQ, S[1]): it()
        for qi in range(NQ):
            xlane("v_add_f32", L + qi, T0)
            a(f"v_rcp_f32 v{L+qi}, v{L+qi}")
        for qi in range(NQ):
            a(f"s_add_u32 s31, s{sRow}, {16*qi}")
            a(f"s_lshr_b32 s76, s31, 5")
            a(f"s_lshl_b32 s76, s76, 18")
            a(f"s_and_b32 s31, s31, 16")
            a(f"s_lshl_b32 s31, s31, 4")
            a(f"s_add_u32 s76, s76, s31")
            a(f"s_add_u32 s76, s76, s{sOB}")
            a(f"s_add_u32 s77, s76, 4096")
            for u in range(4):
                o = O + 32*qi + 8*u
                for k in range(8): a(f"v_mul_f32 v{o+k}, v{o+k}, v{L+qi}")
                d = S[0] + 4 * ((4*qi + u) % 6)
                for k in range(4): a(f"v_cvt_pk_bf16_f32 v{d+k}, v{o+2*k}, v{o+2*k+1}")
                a(f"buffer_store_dwordx4 {vr(d,4)}, v{vST}, s[56:59], s{76 + u//2} offen offset:{(u%2)*2048}")
    def loop(NQ):
        lp = a.newlabel("loop")
        a(f"s_mov_b32 s{sCnt}, 15")
        a.label(lp)
        tick(NQ, 1); tick(NQ, 0)
        a(f"s_sub_u32 s{sCnt}, s{sCnt}, 1")
        a(f"s_cmp_lg_u32 s{sCnt}, 0")
        a(f"s_cbranch_scc1 {lp}")
        tick(NQ, 1)

    rares = []
    a.label("L_M")
    pro(2); loop(2)
    sync(); emit(dma())
    fin(2)
    a(f"s_cmp_eq_u32 s{sPH}, 2")
    a("s_cbranch_scc1 L_done")
    a.label("L_G")
    stamp(2)
    a("s_and_b32 s31, s30, 1")
    a(f"s_mul_i32 s{sRow}, s31, 48")
    a("s_lshr_b32 s31, s30, 1")
    a(f"s_lshl_b32 s{sOB}, s31, 13")
    a(f"s_add_u32 s{sOB}, s{sOB}, s75")
    a(f"s_mul_i32 s{sQB}, s30, {48*256}")
    pro(3); loop(3)
    sync(); emit(dma())
    fin(3)
    stamp(3)
    a(f"s_mov_b32 s{sPH}, 2")
    a(f"s_lshl_b32 s{sRow}, s30, 5")
    a(f"s_lshl_b32 s31, s{sRow}, 8")
    a(f"s_add_u32 s{sQB}, s31, 49152")
    a(f"s_add_u32 s{sOB}, s75, {48*32*8192 + 8192}")
    a("s_cmp_lg_u32 s30, 3")
    a("s_cbranch_scc1 L_M")
    a.label("L_idle")
    emit(adv())
    a(f"s_mov_b32 s{sCnt}, 31")
    a.label("L_idle_loop")
    sync(); emit(dma()); emit(adv())
    a(f"s_sub_u32 s{sCnt}, s{sCnt}, 1")
    a(f"s_cmp_lg_u32 s{sCnt}, 0")
    a("s_cbranch_scc1 L_idle_loop")
    sync(); emit(dma())
    a(f"s_cmp_eq_u32 s{sPH}, 0")
    a("s_cbranch_scc1 L_G")
    a.label("L_done")
    if DIAG:
        a("s_waitcnt vmcnt(0)")
        stamp(4)
        a("s_waitcnt lgkmcnt(0)")
        a("s_cmp_lg_u32 s30, 0")
        a("s_cbranch_scc1 L_end")
        a("s_lshl_b32 s31, s2, 6")
        a(f"s_add_u32 s31, s31, {DIAG_OFF}")
        for k in range(10): a(f"v_mov_b32 v{k}, s{80+k}")
        a("v_mov_b32 v12, 0")
        a("buffer_store_dwordx4 v[0:3], v12, s[56:59], s31 offen")
        a("buffer_store_dwordx4 v[4:7], v12, s[56:59], s31 offen offset:16")
        a("buffer_store_dwordx2 v[8:9], v12, s[56:59], s31 offen offset:32")
    a("s_endpgm")
    for r in rares: r()
    for t in outl: a(t)

    a.label("L_gemm")
    a("s_sub_u32 s30, s30, 4")
    ACC = 0; AF = 48; BF = 64; QH = 112
    vX = 184; vWq = 187; vXr = 191; vWr = 195; vT = 196; vQw = 204
    sCh, sHd, sWb, sRb, sI, sXo, sWo, sC = 48, 49, 50, 51, 52, 53, 54, 55
    a("s_mul_i32 s31, s71, 110592")
    a("s_add_u32 s40, s4, s31"); a("s_addc_u32 s41, s5, 0"); a("s_and_b32 s41, s41, 0xffff")
    a("s_add_u32 s42, s14, s31"); a("s_addc_u32 s43, s15, 0"); a("s_and_b32 s43, s43, 0xffff")
    a("s_and_b32 s11, s11, 0xffff"); a("s_and_b32 s21, s21, 0xffff")
    a("s_mov_b64 s[32:33], s[42:43]"); a("s_mov_b32 s34, 110592"); a("s_mov_b32 s35, 0x20000")
    a("s_mov_b64 s[36:37], s[20:21]"); a("s_mov_b32 s38, 4718592"); a("s_mov_b32 s39, 0x20000")
    a(f"s_lshl_b32 s{sHd}, s70, 9")
    a("s_and_b32 s31, s70, 1"); a("s_lshl_b32 s31, s31, 2"); a(f"s_add_u32 s{sCh}, s71, s31")
    for _ in range(2):
        a(f"s_cmp_ge_u32 s{sCh}, 9"); a("s_cselect_b32 s31, 9, 0"); a(f"s_sub_u32 s{sCh}, s{sCh}, s31")
    a(f"s_mov_b32 s{sC}, {f2u(CSCALE)}")
    a(f"v_lshrrev_b32 v1, 3, v{LANE}")
    a(f"v_and_b32 v2, 7, v{LANE}")
    for k in range(3):
        a(f"s_mul_i32 s31, s30, 24"); a(f"s_add_u32 s31, s31, {8*k}")
        a(f"v_add_u32 v3, s31, v1")
        a(f"v_bfe_u32 v4, v3, 1, 3")
        a(f"v_xor_b32 v4, v4, v2")
        a(f"v_mul_u32_u24 v3, 1152, v3")
        a(f"v_lshl_add_u32 v3, v4, 4, v3")
        a(f"v_subrev_u32 v{vX+k}, {1024*k}, v3")
    a(f"v_lshrrev_b32 v1, 4, v{LANE}")
    a(f"v_and_b32 v2, 15, v{LANE}")
    a(f"v_lshlrev_b32 v4, 2, v1")
    a(f"v_xor_b32 v4, v4, v2")
    for k in range(4):
        a(f"s_lshl_b32 s31, s30, 4"); a(f"s_add_u32 s31, s31, {4*k}")
        a(f"v_add_u32 v3, s31, v1")
        a(f"v_lshlrev_b32 v3, 13, v3")
        a(f"v_lshl_add_u32 v3, v4, 4, v3")
        a(f"v_subrev_u32 v{vWq+k}, {1024*k}, v3")
    a(f"s_mul_i32 s56, s30, 3072")
    a(f"s_lshl_b32 s57, s30, 12"); a(f"s_add_u32 s57, s57, 12288")
    def qp_issue():
        a(f"s_lshl_b32 s{sXo}, s{sCh}, 7")
        a(f"s_lshl_b32 s{sWo}, s{sCh}, 19")
        a(f"s_add_u32 s{sWo}, s{sWo}, s{sHd}")
        a(f"s_add_u32 m0, s{sWb}, s56")
        for k in range(3): a(f"buffer_load_dwordx4 v{vX+k}, s[32:35], s{sXo} offen offset:{1024*k} lds")
        a(f"s_add_u32 m0, s{sWb}, s57")
        for k in range(4): a(f"buffer_load_dwordx4 v{vWq+k}, s[36:39], s{sWo} offen offset:{1024*k} lds")
        a(f"s_add_u32 s{sCh}, s{sCh}, 1"); a(f"s_cmp_eq_u32 s{sCh}, 9"); a(f"s_cselect_b32 s{sCh}, 0, s{sCh}")
    a(f"s_mov_b32 s{sWb}, 0"); qp_issue()
    a(f"s_mov_b32 s{sWb}, {QPB}"); qp_issue()
    a(f"v_and_b32 v1, 31, v{LANE}")
    a(f"v_lshrrev_b32 v2, 5, v{LANE}")
    a(f"v_bfe_u32 v3, v1, 1, 3")
    for s in range(4):
        a(f"v_add_u32 v4, {2*s}, v2")
        a(f"v_xor_b32 v4, v4, v3")
        a(f"v_lshlrev_b32 v4, 4, v4")
        a(f"v_lshl_add_u32 v{vXr+s}, v1, 7, v4")
    a(f"v_and_b32 v3, 15, v{LANE}")
    for jq in range(4):
        a(f"s_lshl_b32 s31, s30, 2"); a(f"s_add_u32 s31, s31, {jq}")
        a(f"v_xor_b32 v4, s31, v3")
        a(f"v_lshlrev_b32 v4, 4, v4")
        a(f"v_lshl_add_u32 v4, v1, 8, v4")
        a(f"v_lshl_add_u32 v{vQw+jq}, v2, 3, v4")
    a(f"v_bfe_u32 v1, v{LANE}, 2, 2")
    a(f"v_lshl_add_u32 v3, v2, 3, v1")
    a(f"v_bfe_u32 v4, v{LANE}, 4, 1")
    a(f"v_bfe_u32 v5, v{LANE}, 1, 1")
    a(f"v_lshl_add_u32 v4, v4, 1, v5")
    a(f"s_lshl_b32 s31, s30, 2")
    a(f"v_add_u32 v4, s31, v4")
    a(f"v_lshlrev_b32 v1, 2, v1")
    a(f"v_xor_b32 v4, v4, v1")
    a(f"v_lshlrev_b32 v4, 4, v4")
    a(f"v_lshl_add_u32 v4, v3, 8, v4")
    a(f"v_and_b32 v5, 1, v{LANE}")
    a(f"v_lshl_add_u32 v4, v5, 3, v4")
    a(f"v_add_u32 v{vWr}, 12288, v4")
    for k in range(48): a(f"v_mov_b32 v{ACC+k}, 0")
    def qp_compute():
        for s in range(4): a(f"v_add_u32 v{vT+s}, s{sRb}, v{vXr+s}")
        a(f"v_add_u32 v{vT+4}, s{sRb}, v{vWr}")
        lg = Lgkm(a)
        def rd(s):
            lg.issue(f"ds_read_b64_tr_b16 {vr(AF+4*s,2)}, v{vT+4} offset:{4096*s}")
            lg.issue(f"ds_read_b64_tr_b16 {vr(AF+4*s+2,2)}, v{vT+4} offset:{4096*s+1024}")
            for qt in range(3):
                lg.issue(f"ds_read_b128 {vr(BF+12*s+4*qt,4)}, v{vT+s} offset:{4096*qt}", (s, qt))
        rd(0); rd(1); rd(2)
        for s in range(4):
            for qt in range(3):
                lg.wait((s, qt))
                a(f"v_mfma_f32_32x32x16_bf16 {vr(ACC+16*qt,16)}, {vr(AF+4*s,4)}, {vr(BF+12*s+4*qt,4)}, {vr(ACC+16*qt,16)}")
            if s == 0: rd(3)
    def qp_pack(dst):
        for k in range(48): a(f"v_mul_f32 v{ACC+k}, s{sC}, v{ACC+k}")
        for k in range(24): a(f"v_cvt_pk_bf16_f32 v{dst+k}, v{ACC+2*k}, v{ACC+2*k+1}")
        for k in range(48): a(f"v_mov_b32 v{ACC+k}, 0")
    def q_write(src, base):
        for qt in range(3):
            for jq in range(4):
                off = base + 8192 * qt
                if off < 65536:
                    a(f"ds_write_b64 v{vQw+jq}, {vr(src+8*qt+2*jq,2)} offset:{off}")
                else:
                    a(f"v_add_u32 v{vT}, {off}, v{vQw+jq}")
                    a(f"ds_write_b64 v{vT}, {vr(src+8*qt+2*jq,2)}")
    a(f"s_mov_b32 s{sWb}, {2*QPB}"); a(f"s_mov_b32 s{sRb}, 0"); a(f"s_mov_b32 s{sI}, 0")
    a.label("L_qs")
    a(f"s_cmp_lt_u32 s{sI}, 8")
    a("s_cbranch_scc1 L_qs_a")
    a("s_waitcnt vmcnt(0)")
    a.label("L_qs_a")
    a("s_waitcnt vmcnt(7)")
    a("s_barrier")
    a(f"s_cmp_ge_u32 s{sI}, 7")
    a("s_cbranch_scc1 L_qs_b")
    qp_issue()
    a.label("L_qs_b")
    qp_compute()
    for r in (sWb, sRb):
        a(f"s_add_u32 s{r}, s{r}, {QPB}"); a(f"s_cmp_eq_u32 s{r}, {3*QPB}"); a(f"s_cselect_b32 s{r}, 0, s{r}")
    a(f"s_add_u32 s{sI}, s{sI}, 1"); a(f"s_cmp_lt_u32 s{sI}, 9")
    a("s_cbranch_scc1 L_qs")
    qp_pack(QH)
    a("s_waitcnt vmcnt(0)")
    return_marker = None
    q_write(QH, QPB)
    a("s_mov_b64 s[32:33], s[40:41]"); a("s_mov_b32 s34, 110592")
    a("s_mov_b64 s[36:37], s[10:11]"); a("s_mov_b32 s38, 4718592")
    a("s_waitcnt lgkmcnt(0)")
    a("s_barrier")
    a(f"s_mov_b32 s{sWb}, 0"); qp_issue()
    a(f"s_mov_b32 s{sWb}, {QPB}"); a(f"s_mov_b32 s{sRb}, 0")
    for job in range(3):
        lp = a.newlabel("qj"); ls = a.newlabel("qjs")
        a(f"s_mov_b32 s{sI}, 0")
        a.label(lp)
        a("s_waitcnt vmcnt(0)")
        a("s_barrier")
        a(f"s_cmp_lg_u32 s{sI}, 8")
        a(f"s_cbranch_scc1 {ls}")
        if job == 0:
            a(f"s_add_u32 s{sHd}, s{sHd}, 256")
        elif job == 1:
            a("s_mov_b64 s[32:33], s[42:43]"); a("s_mov_b64 s[36:37], s[20:21]")
        else:
            a("s_mov_b32 s34, 0"); a("s_mov_b32 s38, 0")
        a.label(ls)
        qp_issue()
        qp_compute()
        a(f"s_sub_u32 s{sWb}, {QPB}, s{sWb}"); a(f"s_sub_u32 s{sRb}, {QPB}, s{sRb}")
        a(f"s_add_u32 s{sI}, s{sI}, 1"); a(f"s_cmp_lt_u32 s{sI}, 9")
        a(f"s_cbranch_scc1 {lp}")
        qp_pack(QH + 24 * job)
    a("s_waitcnt vmcnt(0)")
    a("s_barrier")
    for job in range(3): q_write(QH + 24 * job, 24576 * job)
    a("s_waitcnt lgkmcnt(0)")
    a.label("L_end")
    a("s_endpgm")

def gen_outproj(a, LA=3):
    kernel_header(a, "oproj_kernel")
    NB = LA + 1
    a("s_cmp_ge_u32 s2, 432")
    a("s_cbranch_scc1 L2_end")
    a("s_load_dwordx2 s[4:5], s[0:1], 32")
    a("s_load_dwordx2 s[6:7], s[0:1], 72")
    a("s_load_dwordx2 s[8:9], s[0:1], 80")
    a("s_load_dwordx2 s[10:11], s[0:1], 96")
    LANE = 120
    a("v_lshrrev_b32 v1, 6, v0")
    a(f"v_and_b32 v{LANE}, 63, v0")
    a("v_readfirstlane_b32 s30, v1")
    a("s_and_b32 s40, s2, 7")
    a("s_lshr_b32 s41, s2, 3")
    a("s_cmp_ge_u32 s41, 27")
    a("s_cselect_b32 s42, 1, 0")
    a("s_mul_i32 s31, s42, 27")
    a("s_sub_u32 s41, s41, s31")
    a("s_mul_i32 s43, s41, 57")
    a("s_lshr_b32 s43, s43, 9")
    a("s_mul_i32 s31, s43, 9")
    a("s_sub_u32 s44, s41, s31")
    a("s_mul_i32 s40, s40, 3")
    a("s_add_u32 s43, s43, s40")
    a("s_waitcnt lgkmcnt(0)")
    a("s_cmp_eq_u32 s42, 1")
    a("s_cselect_b32 s12, s6, s4"); a("s_cselect_b32 s13, s7, s5"); a("s_and_b32 s13, s13, 0xffff")
    a("s_mov_b32 s14, 4718592"); a("s_mov_b32 s15, 0x20000")
    a("s_mov_b32 s16, s10"); a("s_and_b32 s17, s11, 0xffff"); a(f"s_mov_b32 s18, {O_BYTES}"); a("s_mov_b32 s19, 0x20000")
    a("s_mov_b32 s20, s8"); a("s_and_b32 s21, s9, 0xffff"); a(f"s_mov_b32 s22, {16*96*1152*2}"); a("s_mov_b32 s23, 0x20000")
    ACC = 0; OF = 128; AF = 64; vW = 80; vO = 84; vR = 86; vT = 88
    sWo, sO0, sO1, sI, sLb = 45, 46, 47, 48, 49
    a(f"s_mul_i32 s{sWo}, s30, {32*1152}"); a("s_lshl_b32 s31, s44, 7"); a(f"s_add_u32 s{sWo}, s{sWo}, s31")
    a("s_mul_i32 s31, s42, 48"); a("s_lshl_b32 s50, s43, 1"); a("s_add_u32 s31, s31, s50"); a("s_lshl_b32 s31, s31, 18")
    a("s_lshl_b32 s50, s30, 11"); a(f"s_add_u32 s{sO0}, s31, s50"); a(f"s_add_u32 s{sO1}, s{sO0}, 0x40000")
    a(f"s_mul_i32 s{sLb}, s30, {NB*4096}")
    a(f"v_lshrrev_b32 v1, 3, v{LANE}")
    a(f"v_and_b32 v2, 7, v{LANE}")
    a(f"v_bfe_u32 v3, v{LANE}, 4, 1")
    a(f"v_lshlrev_b32 v3, 2, v3")
    a(f"v_xor_b32 v2, v2, v3")
    a(f"v_mul_u32_u24 v1, 1152, v1")
    a(f"v_lshl_add_u32 v1, v2, 4, v1")
    for i in range(4): a(f"v_add_u32 v{vW+i}, {i*(9216-1024)}, v1")
    a(f"v_lshlrev_b32 v{vO}, 4, v{LANE}")
    def issue(buf):
        a(f"s_add_u32 m0, s{sLb}, {buf*4096}")
        for i in range(4): a(f"buffer_load_dwordx4 v{vW+i}, s[12:15], s{sWo} offen offset:{1024*i} lds")
        for mb in range(2):
            for gg in range(2):
                a(f"buffer_load_dwordx4 {vr(OF+16*buf+8*mb+4*gg,4)}, v{vO}, s[16:19], s{sO0+mb} offen offset:{1024*gg}")
        a(f"s_add_u32 s{sWo}, s{sWo}, {128*1152}")
        a(f"s_add_u32 s{sO0}, s{sO0}, 8192"); a(f"s_add_u32 s{sO1}, s{sO1}, 8192")
    for b in range(LA): issue(b)
    a(f"v_lshrrev_b32 v1, 5, v{LANE}")
    a(f"v_bfe_u32 v2, v{LANE}, 2, 2")
    a(f"v_lshl_add_u32 v1, v1, 2, v2")
    a(f"v_bfe_u32 v2, v{LANE}, 4, 1")
    a(f"v_bfe_u32 v3, v{LANE}, 1, 1")
    a(f"v_lshl_add_u32 v2, v2, 1, v3")
    a(f"v_bfe_u32 v3, v{LANE}, 3, 1")
    a(f"v_lshl_add_u32 v2, v3, 2, v2")
    a(f"v_and_b32 v3, 1, v{LANE}")
    a(f"v_lshlrev_b32 v3, 3, v3")
    a(f"v_lshl_add_u32 v3, v1, 7, v3")
    a(f"v_add_u32 v3, s{sLb}, v3")
    a(f"v_lshl_add_u32 v{vR}, v2, 4, v3")
    a(f"v_xor_b32 v2, 4, v2")
    a(f"v_lshl_add_u32 v{vR+1}, v2, 4, v3")
    for k in range(64): a(f"v_mov_b32 v{ACC+k}, 0")
    def compute(buf):
        lg = Lgkm(a)
        for gg in range(2):
            for nt in range(2):
                for e in range(2):
                    lg.issue(f"ds_read_b64_tr_b16 {vr(AF+8*gg+4*nt+2*e,2)}, v{vR+nt} offset:{buf*4096+e*2048+gg*1024}", (gg, nt))
        return lg
    def mm(lg, buf):
        for gg in range(2):
            for nt in range(2):
                lg.wait((gg, nt))
                for mb in range(2):
                    c = vr(ACC + 32*nt + 16*mb, 16)
                    a(f"v_mfma_f32_32x32x16_bf16 {c}, {vr(AF+8*gg+4*nt,4)}, {vr(OF+16*buf+8*mb+4*gg,4)}, {c}")
    assert 32 % NB == 0
    a(f"s_mov_b32 s{sI}, 0")
    a.label("L2_loop")
    for b in range(NB):
        a(f"s_cmp_ge_u32 s{sI}, {32 - LA - b}")
        a("s_cselect_b32 s14, 0, s14"); a("s_cselect_b32 s18, 0, s18")
        issue((b + LA) % NB)
        a(f"s_waitcnt vmcnt({8*LA})")
        lg = compute(b)
        mm(lg, b)
    a(f"s_add_u32 s{sI}, s{sI}, {NB}"); a(f"s_cmp_lt_u32 s{sI}, 32")
    a("s_cbranch_scc1 L2_loop")
    a("s_waitcnt vmcnt(0)")
    a("s_barrier")
    a(f"v_and_b32 v{vT}, 31, v{LANE}")
    a(f"v_lshrrev_b32 v{vT+1}, 5, v{LANE}")
    a(f"v_and_b32 v{vT+2}, 15, v{LANE}")
    a("s_lshl_b32 s31, s30, 14")
    a(f"v_lshlrev_b32 v{vT}, 8, v{vT}")
    a(f"v_add_u32 v{vT}, s31, v{vT}")
    for nt in range(2):
        for j in range(4):
            a(f"v_add_u32 v{vT+3}, {8*nt+2*j}, v{vT+1}")
            a(f"v_xor_b32 v{vT+3}, v{vT+3}, v{vT+2}")
            a(f"v_lshl_add_u32 v{vT+3}, v{vT+3}, 4, v{vT}")
            for mb in range(2):
                a(f"ds_write_b128 v{vT+3}, {vr(ACC+32*nt+16*mb+4*j,4)} offset:{mb*8192}")
    a("s_waitcnt lgkmcnt(0)")
    a("s_barrier")
    a(f"v_lshrrev_b32 v{vT}, 2, v{LANE}")
    a(f"v_and_b32 v{vT+1}, 3, v{LANE}")
    a(f"v_lshlrev_b32 v{vT+1}, 2, v{vT+1}")
    a("s_lshl_b32 s31, s30, 12")
    a(f"v_lshlrev_b32 v{vT+2}, 8, v{vT}")
    a(f"v_add_u32 v{vT+2}, s31, v{vT+2}")
    lg = Lgkm(a)
    for c in range(4):
        a(f"v_add_u32 v{vT+3}, {c}, v{vT+1}")
        a(f"v_xor_b32 v{vT+3}, v{vT+3}, v{vT}")
        a(f"v_lshl_add_u32 v{vT+3}, v{vT+3}, 4, v{vT+2}")
        for sw in range(4):
            lg.issue(f"ds_read_b128 {vr(ACC+16*sw+4*c,4)}, v{vT+3} offset:{sw*16384}")
    lg.waitall()
    for k in range(16):
        a(f"v_add_f32 v{ACC+k}, v{ACC+k}, v{ACC+16+k}")
        a(f"v_add_f32 v{ACC+32+k}, v{ACC+32+k}, v{ACC+48+k}")
    for k in range(16): a(f"v_add_f32 v{ACC+k}, v{ACC+k}, v{ACC+32+k}")
    for k in range(8): a(f"v_cvt_pk_bf16_f32 v{ACC+16+k}, v{ACC+2*k}, v{ACC+2*k+1}")
    a("s_lshl_b32 s31, s43, 6"); a("s_lshl_b32 s50, s30, 4"); a("s_add_u32 s31, s31, s50"); a("s_mul_i32 s31, s31, 2304")
    a("s_mul_i32 s50, s42, 1152"); a("s_add_u32 s31, s31, s50"); a("s_lshl_b32 s50, s44, 7"); a("s_add_u32 s31, s31, s50")
    a(f"v_mul_u32_u24 v{vT}, 2304, v{vT}")
    a(f"v_lshl_add_u32 v{vT}, v{vT+1}, 3, v{vT}")
    a(f"buffer_store_dwordx4 {vr(ACC+16,4)}, v{vT}, s[20:23], s31 offen")
    a(f"buffer_store_dwordx4 {vr(ACC+20,4)}, v{vT}, s[20:23], s31 offen offset:16")
    a.label("L2_end")
    a("s_endpgm")

def build(DIAG=False, **kw):
    a = Asm()
    gen_main(a, DIAG=DIAG, **kw)
    gen_outproj(a)
    a.pad()
    hdr = ("; @launch kernel=attn_kernel grid=(256,1,1) block=(512,1,1) lds=163840\n"
           "; @launch kernel=oproj_kernel grid=(432,1,1) block=(256,1,1) lds=65536\n"
           '.amdgcn_target "amdgcn-amd-amdhsa--gfx950"\n.text\n')
    return hdr + a.text() + kernel_desc("attn_kernel", 256) + kernel_desc("oproj_kernel", 192)

if __name__ == "__main__":
    out = sys.argv[1] if len(sys.argv) > 1 else "k1.s"
    open(out, "w").write(build(DIAG=("diag" in sys.argv)))
```

```python
import sys, math, struct, copy
from asmgen import *
NAME = "concat_heads__gqa_block_cached__mha_block_cached__near_ridge"

TILE = 8448
SLOT = 2 * TILE
NSLOT = 4
RSZ = 163840 - NSLOT * SLOT
RING0 = RSZ
QPD = 45056
QROW = 272
QHEAD = 96 * QROW
WOB = 32768
TB = [53248, 98304, 131072]
PART = 110592
FLAG_OFF = 60 << 20
DIAG_OFF = 64 << 20
CSCALE = math.log2(math.e) / math.sqrt(128.0)
def f2u(x): return struct.unpack("<I", struct.pack("<f", x))[0]
def vr(b, n): return f"v[{b}:{b+n-1}]"

def interleave(a, items, fillers):
    rem = sum(c for _, c in fillers) + sum(c for _, c in items)
    fi = 0; n = len(items)
    for k, (it, fc) in enumerate(items):
        it()
        tgt = rem / (n - k)
        cur = fc
        while fi < len(fillers) and cur + fillers[fi][1] * 0.5 <= tgt + 0.01:
            a(fillers[fi][0]); cur += fillers[fi][1]; fi += 1
        rem -= cur
    while fi < len(fillers):
        a(fillers[fi][0]); fi += 1

def gen_main(A, DIAG=0, SMFRAC=0.42, KPRE=6, PRIO=1, LPRIO=0, LA=3, EXP=()):
    st = {"mute": False, "T": None, "ops": [], "site": 0, "mins": None, "rec": None}
    class Em:
        def __call__(self, t):
            if st.get("cap") is not None and "vmcnt" not in t and "L_" not in t: st["cap"].append(t)
            if not st["mute"]: A(t)
        def label(self, n):
            if not st["mute"]: A.label(n)
        def newlabel(self, b): return A.newlabel(b)
    a = Em()
    kernel_header(A, NAME + "_kernel")
    a("s_cmp_ge_u32 s2, 256")
    a("s_cbranch_scc1 L_end")
    a("s_load_dwordx16 s[4:19], s[0:1], 0")
    a("s_load_dwordx8 s[20:27], s[0:1], 64")
    a("s_load_dwordx2 s[28:29], s[0:1], 96")
    LANE = 250
    a("v_lshrrev_b32 v1, 6, v0")
    a(f"v_and_b32 v{LANE}, 63, v0")
    a("v_readfirstlane_b32 s30, v1")
    a("s_bfe_u32 s33, s2, 0x10003")
    a("s_cmp_lt_u32 s30, 4")
    a("s_cbranch_scc1 L_attn")
    def emit(fl):
        for t, _ in fl: a(t)
    def srd(d, base, size):
        a(f"s_mov_b32 s{d}, s{base}"); a(f"s_and_b32 s{d+1}, s{base+1}, 0xffff"); a(f"s_mov_b32 s{d+2}, {size}"); a(f"s_mov_b32 s{d+3}, 0x20000")
    def srdo(d, base, off, size):
        a(f"s_add_u32 s{d}, s{base}, {off}"); a(f"s_addc_u32 s{d+1}, s{base+1}, 0"); a(f"s_and_b32 s{d+1}, s{d+1}, 0xffff")
        a(f"s_mov_b32 s{d+2}, {size}"); a(f"s_mov_b32 s{d+3}, 0x20000")

    a("s_and_b32 s70, s2, 3"); a("s_lshl_b32 s70, s70, 1"); a("s_bfe_u32 s31, s2, 0x10004"); a("s_add_u32 s70, s70, s31")
    a("s_bfe_u32 s71, s2, 0x10002"); a("s_lshl_b32 s71, s71, 3"); a("s_lshr_b32 s31, s2, 5"); a("s_add_u32 s71, s71, s31")
    a("s_mov_b32 s84, s33")
    a("s_sub_u32 s30, s30, 4")
    if LPRIO: a(f"s_setprio {LPRIO}")
    if DIAG == 4: a("s_memtime s[100:101]")
    ACC = 0; XF = [96, 144]; WF = [192, 208]; QH = 144
    vX = 224; vWq = 227; vXr = 231; vWr = 235; vT = 236; vQw = 241; vL = 251; vF = 252
    sCh, sHd, sWb, sRb, sI, sXo, sWo = 60, 61, 62, 63, 64, 65, 66
    sC = 54
    sKt, sKu, sVt, sVu, sW, sWend, sTog, sX = 44, 45, 46, 47, 48, 49, 50, 51
    def vm(text, tag=None):
        a(text); st["ops"].append(tag)
    def newer(tags):
        last = -1
        for i, t in enumerate(st["ops"]):
            if t in tags: last = i
        return len(st["ops"]) - 1 - last
    def vwait(tags):
        n = min(newer(tags), 63)
        if st["rec"] is not None:
            k = st["site"]; st["site"] += 1
            if st["mins"] is not None: n = st["mins"][k]
            else: st["rec"][k] = min(st["rec"].get(k, 99), n)
        a(f"s_waitcnt vmcnt({n})")
    def run_loop(iters, body, extraB=0):
        if iters == 1: body(0); return
        snap = (st["T"], list(st["ops"])); was = st["mute"]
        st["mute"] = True; st["rec"] = {}; st["mins"] = None
        caps = []
        for it in range(iters):
            st["site"] = 0; st["cap"] = []; body(it); caps.append(st["cap"])
        st["cap"] = None
        assert all(c == caps[0] for c in caps), "loop iterations differ"
        mins = st["rec"]
        st["T"], st["ops"] = snap[0], list(snap[1])
        st["mute"] = was; st["mins"] = mins
        lp = a.newlabel("lp")
        if extraB: a(f"s_mul_i32 s{sI}, s84, {extraB}"); a(f"s_add_u32 s{sI}, s{sI}, {iters}")
        else: a(f"s_mov_b32 s{sI}, {iters}")
        a.label(lp)
        for it in range(iters):
            st["site"] = 0; body(it)
            if it == 0:
                a(f"s_sub_u32 s{sI}, s{sI}, 1"); a(f"s_cmp_lg_u32 s{sI}, 0"); a(f"s_cbranch_scc1 {lp}")
                st["mute"] = True
        st["mute"] = was; st["rec"] = None; st["mins"] = None
    def tlog():
        if DIAG != 4: return
        l1 = a.newlabel("tl"); l2 = a.newlabel("tl")
        a("s_memtime s[92:93]"); a("s_memrealtime s[96:97]"); a("s_waitcnt lgkmcnt(0)")
        a("s_cmp_ge_u32 s94, 64"); a(f"s_cbranch_scc1 {l1}")
        a("s_mov_b32 m0, s94"); a("s_nop 0"); a("v_writelane_b32 v248, s92, m0"); a("v_writelane_b32 v246, s96, m0"); a(f"s_branch {l2}")
        a.label(l1); a("s_mov_b32 m0, s94"); a("s_nop 0"); a("v_writelane_b32 v249, s92, m0"); a("v_writelane_b32 v247, s96, m0")
        a.label(l2); a("s_add_u32 s94, s94, 1")
    def gsync(*tags):
        tg = set(tags)
        if st["T"] is not None: tg.add(("kv", st["T"]))
        vwait(tg); a("s_barrier")
        if DIAG == 4 and st["T"] is not None:
            l = a.newlabel("tg")
            a("s_xor_b32 s95, s95, s84"); a(f"s_cbranch_scc1 {l}"); tlog(); a.label(l)
        else: tlog()
        if st["T"] is not None: st["T"] += 1

    a(f"v_lshrrev_b32 v1, 3, v{LANE}")
    a(f"v_and_b32 v2, 7, v{LANE}")
    for k in range(3):
        a(f"s_mul_i32 s31, s30, 24"); a(f"s_add_u32 s31, s31, {8*k}")
        a(f"v_add_u32 v3, s31, v1")
        a(f"v_bfe_u32 v4, v3, 1, 3")
        a(f"v_xor_b32 v4, v4, v2")
        a(f"v_mul_u32_u24 v3, 1152, v3")
        a(f"v_lshl_add_u32 v3, v4, 4, v3")
        a(f"v_subrev_u32 v{vX+k}, {1024*k}, v3")
    a(f"v_lshrrev_b32 v1, 4, v{LANE}")
    a(f"v_and_b32 v2, 15, v{LANE}")
    a(f"v_lshlrev_b32 v4, 2, v1")
    a(f"v_xor_b32 v4, v4, v2")
    a(f"s_lshl_b32 s31, s30, 4")
    a(f"v_add_u32 v3, s31, v1")
    a(f"v_lshlrev_b32 v3, 13, v3")
    a(f"v_lshl_add_u32 v{vWq}, v4, 4, v3")
    for k in range(1, 4): a(f"v_add_u32 v{vWq+k}, {k*(32768-1024)}, v{vWq}")
    a(f"s_mul_i32 s68, s30, 3072")
    a(f"s_lshl_b32 s69, s30, 12"); a(f"s_add_u32 s69, s69, 12288")
    a(f"s_lshl_b32 s{sHd}, s70, 10")
    a("s_lshl_b32 s31, s70, 2"); a(f"s_add_u32 s{sCh}, s71, s31")
    a(f"s_mul_i32 s31, s{sCh}, 57"); a("s_lshr_b32 s31, s31, 9"); a("s_mul_i32 s31, s31, 9"); a(f"s_sub_u32 s{sCh}, s{sCh}, s31")
    a("s_mul_i32 s3, s71, 110592")
    a("s_waitcnt lgkmcnt(0)")
    a("s_cmp_eq_u32 s84, 1")
    for d, b in ((4, 14), (6, 16), (8, 18), (10, 20), (12, 22)): a(f"s_cselect_b64 s[{d}:{d+1}], s[{b}:{b+1}], s[{d}:{d+1}]")
    srdo(72, 4, "s3", 110592)
    srd(76, 10, 4718592)
    nxch = f"s_add_u32 s{sCh}, s{sCh}, 1\ns_cmp_eq_u32 s{sCh}, 9\ns_cselect_b32 s{sCh}, 0, s{sCh}"
    def qp_issue_l(tag):
        l = []
        pre = f"s_lshl_b32 s{sXo}, s{sCh}, 7\ns_lshl_b32 s{sWo}, s{sCh}, 19\ns_add_u32 s{sWo}, s{sWo}, s{sHd}\ns_add_u32 m0, s{sWb}, s68\n"
        for k in range(3): l.append((pre if k == 0 else "") + f"buffer_load_dwordx4 v{vX+k}, s[72:75], s{sXo} offen offset:{1024*k} lds")
        for k in range(4): l.append((f"s_add_u32 m0, s{sWb}, s69\n" if k == 0 else "") + f"buffer_load_dwordx4 v{vWq+k}, s[76:79], s{sWo} offen offset:{1024*k} lds")
        for k in range(4): l.append((f"s_add_u32 m0, m0, 16384\ns_add_u32 s{sWo}, s{sWo}, 256\n" if k == 0 else "") + f"buffer_load_dwordx4 v{vWq+k}, s[76:79], s{sWo} offen offset:{1024*k} lds")
        l[-1] += "\n" + nxch
        return [(t, tag) for t in l]
    def vml(l):
        for t, tg in l: vm(t, tg)
    if DIAG == 4: a("s_memtime s[96:97]")
    a(f"s_mov_b32 s{sWb}, {2*QPD}"); vml(qp_issue_l(("q", 0)))
    if DIAG == 4:
        a("s_memtime s[98:99]"); a("s_waitcnt lgkmcnt(0)")
        a("v_writelane_b32 v248, s100, 0"); a("v_writelane_b32 v248, s96, 1"); a("v_writelane_b32 v248, s98, 2"); a("s_mov_b32 s94, 3"); a("s_mov_b32 s95, s84")
    a("s_lshl_b32 s31, s71, 3"); a("s_add_u32 s52, s31, s70")
    a("s_add_u32 s31, s84, 19"); a("s_lshl_b32 s54, s52, s31")
    a("s_lshl_b32 s55, s30, 11"); a("s_add_u32 s54, s54, s55")
    a("s_lshl_b32 s53, 1, s31"); a("s_sub_u32 s53, s53, s55")
    srdo(32, 6, "s54", "s53"); srdo(36, 8, "s54", "s53")
    a(f"s_mov_b32 s{sC}, {f2u(CSCALE)}"); a(f"s_mov_b32 s{sC+1}, {f2u(CSCALE)}")
    a(f"s_lshl_b32 s{sTog}, s84, 18")
    for r in (sKt, sKu, sVt, sVu): a(f"s_mov_b32 s{r}, 0")
    a(f"s_mul_i32 s31, s30, 2112")
    a(f"s_add_u32 s{sW}, s31, {RING0}")
    a(f"s_add_u32 s{sWend}, s31, {RING0 + NSLOT*SLOT}")
    a(f"v_lshlrev_b32 v{vL}, 4, v{LANE}")
    def upd(t, u):
        return (f"\ns_xor_b32 s{u}, s{u}, s{sTog}\ns_cselect_b32 s31, 0, 8192\ns_add_u32 s{t}, s{t}, s31"
                f"\ns_and_b32 s31, s{t}, s{sTog}\ns_add_u32 s{t}, s{t}, s31")
    def dma_l(s):
        def pair(sr, t, u, lo, post):
            return [f"s_add_u32 s{sX}, s{t}, s{u}\ns_add_u32 m0, s{sW}, {lo}\nbuffer_load_dwordx4 v{vL}, s[{sr}:{sr+3}], s{sX} offen nt lds",
                    f"s_add_u32 m0, s{sW}, {lo+32}\nbuffer_load_dwordx4 v{vL}, s[{sr}:{sr+3}], s{sX} offen offset:1024 nt lds" + post]
        if s == 0: l = pair(32, sKt, sKu, TILE, upd(sKt, sKu))
        elif s == 1: l = pair(36, sVt, sVu, TILE, f"\ns_cmp_eq_u32 s84, 0\ns_cselect_b32 s{sVt}, 8192, 0")
        else: l = pair(36, sVt, sVu, TILE, upd(sVt, sVu))
        l += pair(32, sKt, sKu, 0, upd(sKt, sKu))
        l[-1] += f"\ns_add_u32 s{sW}, s{sW}, {SLOT}\ns_cmp_eq_u32 s{sW}, s{sWend}\ns_cselect_b32 s31, {NSLOT*SLOT}, 0\ns_sub_u32 s{sW}, s{sW}, s31"
        if "noload" in EXP: return []
        return [(t, ("kv", s)) for t in l]
    def kv_l(): return dma_l(st["T"] - 1 + 3)
    def dma(): vml(kv_l())
    a(f"v_and_b32 v1, 31, v{LANE}")
    a(f"v_lshrrev_b32 v2, 5, v{LANE}")
    a(f"v_bfe_u32 v3, v1, 1, 3")
    for s in range(4):
        a(f"v_add_u32 v4, {2*s}, v2")
        a(f"v_xor_b32 v4, v4, v3")
        a(f"v_lshlrev_b32 v4, 4, v4")
        a(f"v_lshl_add_u32 v{vXr+s}, v1, 7, v4")
    a(f"v_mul_u32_u24 v4, {QROW}, v1")
    a(f"v_lshl_add_u32 v4, v2, 3, v4")
    a(f"s_lshl_b32 s31, s30, 6")
    a(f"v_add_u32 v{vQw}, s31, v4")
    a(f"v_bfe_u32 v1, v{LANE}, 2, 2")
    a(f"v_lshl_add_u32 v3, v2, 3, v1")
    a(f"v_bfe_u32 v4, v{LANE}, 4, 1")
    a(f"v_bfe_u32 v5, v{LANE}, 1, 1")
    a(f"v_lshl_add_u32 v4, v4, 1, v5")
    a(f"s_lshl_b32 s31, s30, 2")
    a(f"v_add_u32 v4, s31, v4")
    a(f"v_lshlrev_b32 v1, 2, v1")
    a(f"v_xor_b32 v4, v4, v1")
    a(f"v_lshlrev_b32 v4, 4, v4")
    a(f"v_lshl_add_u32 v4, v3, 8, v4")
    a(f"v_and_b32 v5, 1, v{LANE}")
    a(f"v_lshl_add_u32 v4, v5, 3, v4")
    a(f"v_add_u32 v{vWr}, 12288, v4")
    def zero(b, n):
        for k in range(0, n, 2): a(f"v_mov_b64 {vr(b+k,2)}, 0")
    zero(ACC, 96)
    a(f"s_mov_b32 s{sWb}, 0"); vml(qp_issue_l(("q", 1)))
    def qp_addr():
        for s in range(4): a(f"v_add_u32 v{vT+s}, s{sRb}, v{vXr+s}")
        a(f"v_add_u32 v{vT+4}, s{sRb}, v{vWr}")
    def rd_w(s, hd): return [f"ds_read_b64_tr_b16 {vr(WF[hd]+4*s,2)}, v{vT+4} offset:{16384*hd+4096*s}",
                             f"ds_read_b64_tr_b16 {vr(WF[hd]+4*s+2,2)}, v{vT+4} offset:{16384*hd+4096*s+1024}"]
    def rd_x(s, X): return [f"ds_read_b128 {vr(X+12*s+4*qt,4)}, v{vT+s} offset:{4096*qt}" for qt in range(3)]
    def mm(s, qt, X, hd):
        c = vr(ACC + 48*hd + 16*qt, 16)
        return f"v_mfma_f32_32x32x16_bf16 {c}, {vr(WF[hd]+4*s,4)}, {vr(X+12*s+4*qt,4)}, {c}"
    def qp_pack(hd):
        A0 = ACC + 48 * hd; dst = QH + 24 * hd
        for k in range(0, 48, 2): a(f"v_pk_mul_f32 {vr(A0+k,2)}, {vr(A0+k,2)}, s[{sC}:{sC+1}]")
        for k in range(24): a(f"v_cvt_pk_bf16_f32 v{dst+k}, v{A0+2*k}, v{A0+2*k+1}")
    def q_write(hd):
        src = QH + 24 * hd
        for qt in range(3):
            for jq in range(4):
                a(f"ds_write_b64 v{vQw}, {vr(src+8*qt+2*jq,2)} offset:{hd*QHEAD + 32*QROW*qt + 16*jq}")
    def rot3():
        for r in (sWb, sRb):
            a(f"s_add_u32 s{r}, s{r}, {QPD}"); a(f"s_cmp_eq_u32 s{r}, {3*QPD}"); a(f"s_cselect_b32 s{r}, 0, s{r}")
    def sstep(par, lds, first=False):
        qp_addr()
        lg = Lgkm(a)
        rds = []
        for s in range(4): rds += [(t, None) for t in rd_w(s, 0)] + [(t, (s, qt)) for qt, t in enumerate(rd_x(s, XF[par]))]
        lds = list(lds)
        for k in range(12):
            if not first: a(mm(k // 3, k % 3, XF[1-par], 1))
            for t, tg in rds[2*k:2*k+2]: lg.issue(t, tg)
            if k % 2 == 0 and lds: vm(*lds.pop(0))
        rb = []
        for s in range(4): rb += rd_w(s, 1)
        for k in range(12):
            lg.wait((k // 3, k % 3))
            a(mm(k // 3, k % 3, XF[par], 0))
            if k < 8: lg.issue(rb[k])
            if k % 2 == 0 and lds: vm(*lds.pop(0))
        assert not lds
        a("s_waitcnt lgkmcnt(0)")
    a(f"s_mov_b32 s{sWb}, {QPD}"); a(f"s_mov_b32 s{sRb}, {2*QPD}")
    tlog()
    gsync(("q", 0)); sstep(0, qp_issue_l(("q", 2)), True); rot3()
    def sbody(it):
        gsync(("q", 2*it+1)); sstep(1, qp_issue_l(("q", 2*it+3))); rot3()
        gsync(("q", 2*it+2)); sstep(0, qp_issue_l(("q", 2*it+4))); rot3()
    run_loop(3, sbody)
    gsync(("q", 7)); sstep(1, dma_l(0) + dma_l(1)); rot3()
    gsync(("q", 8)); sstep(0, dma_l(2))
    a("s_barrier")
    pk0 = [f"v_pk_mul_f32 {vr(ACC+k,2)}, {vr(ACC+k,2)}, s[{sC}:{sC+1}]" for k in range(0, 48, 2)] + \
          [f"v_cvt_pk_bf16_f32 v{QH+k}, v{ACC+2*k}, v{ACC+2*k+1}" for k in range(24)]
    for k in range(12):
        a(mm(k // 3, k % 3, XF[0], 1))
        if k >= 2:
            for t in pk0[5*(k-2):5*(k-1)]: a(t)
    q_write(0)
    qp_pack(1)
    q_write(1)
    a("s_waitcnt lgkmcnt(0)")
    st["T"] = 0
    def plain_until(t, extraB=0):
        n = t - st["T"]
        assert n >= 3 or (n >= 0 and not extraB)
        if n == 0: return
        def body(it): gsync(); dma()
        run_loop(n, body, extraB)
    def flag_addr(v):
        a(f"v_lshrrev_b32 v{v}, 2, v{vL}"); a(f"v_and_b32 v{v+1}, 64, v{v}"); a(f"v_and_b32 v{v}, 60, v{v}")
        a(f"v_lshl_add_u32 v{v}, v{v+1}, 5, v{v}")
    gsync(); dma()
    a(f"s_add_u32 s{sHd}, s{sHd}, 512")
    a("s_lshl_b32 s31, s71, 7"); a(f"s_add_u32 s31, s31, {FLAG_OFF}")
    srdo(56, 28, "s31", 4096)
    flag_addr(2)
    vm(f"buffer_load_dword v{vF}, v2, s[56:59], 0 offen sc1", "f0")
    zero(ACC, 96)
    a(f"s_mov_b32 s{sWb}, 0"); a(f"s_mov_b32 s{sRb}, 0")
    gsync(); vml(qp_issue_l(("r", 0))); dma()
    gsync(); dma()
    a(f"s_mov_b32 s{sWb}, {QPD}")
    gsync(); vml(qp_issue_l(("r", 1))); dma()
    a(f"s_mov_b32 s{sWb}, 0")
    def qbody(k, issue=True):
        gsync(("r", k))
        dma()
        qp_addr()
        lg = Lgkm(a)
        for s in range(3):
            for t in rd_w(s, 0): lg.issue(t)
            for qt, t in enumerate(rd_x(s, XF[0])): lg.issue(t, (s, qt))
        more = [(t, None) for t in rd_w(3, 0)] + [(t, (3, qt)) for qt, t in enumerate(rd_x(3, XF[0]))]
        for s in range(4): more += [(t, None) for t in rd_w(s, 1)]
        for s in range(4):
            for qt in range(3):
                lg.wait((s, qt)); a(mm(s, qt, XF[0], 0))
                for t, tg in more[:2]: lg.issue(t, tg)
                more = more[2:]
        a("s_waitcnt lgkmcnt(0)")
        gsync()
        lds = (qp_issue_l(("r", k + 2)) if issue else []) + kv_l()
        for j in range(15):
            if j < len(lds): vm(*lds[j])
            if j < 12: a(mm(j // 3, j % 3, XF[0], 1))
        a(f"s_sub_u32 s{sWb}, {QPD}, s{sWb}"); a(f"s_sub_u32 s{sRb}, {QPD}, s{sRb}")
    run_loop(7, qbody)
    run_loop(2, lambda it: qbody(7 + it, False))
    gsync(); dma(); qp_pack(0)
    gsync(); dma(); qp_pack(1)
    gsync(); dma(); q_write(0); a("s_waitcnt lgkmcnt(0)")
    gsync(); dma(); q_write(1); a("s_waitcnt lgkmcnt(0)")
    OB = 0; PK = 96; OC = 204; AF = 228; vW = 244; vR = [245, 253]; ST = PK + 96
    sWo0, sPo, sA, sB, sCr, sD2 = 61, 65, 66, 67, 53, 63
    gsync("f0"); dma()
    a(f"v_add_u32 v{vF}, 1, v{vF}")
    srd(72, 12, 4718592)
    a("s_lshl_b32 s31, s84, 4"); a("s_add_u32 s31, s31, s71"); a(f"s_mul_i32 s31, s31, {8*PART}")
    srdo(76, 28, "s31", 8 * PART)
    srd(80, 24, 16*96*1152*2)
    a("s_lshl_b32 s31, s70, 3"); a("s_add_u32 s31, s31, s30"); a(f"s_mul_i32 s{sWo0}, s31, {64*1152}")
    a(f"s_mul_i32 s{sPo}, s70, {PART}"); a(f"s_add_u32 s{sPo}, s{sPo}, s68")
    a("s_lshl_b32 s69, s30, 13")
    a(f"v_lshrrev_b32 v1, 3, v{LANE}")
    a(f"v_and_b32 v2, 7, v{LANE}")
    a(f"v_bfe_u32 v3, v{LANE}, 4, 2")
    a(f"v_lshlrev_b32 v3, 1, v3")
    a(f"v_xor_b32 v2, v2, v3")
    a(f"v_mul_u32_u24 v1, 1152, v1")
    a(f"v_lshl_add_u32 v{vW}, v2, 4, v1")
    a(f"v_bfe_u32 v1, v{LANE}, 1, 1")
    a("s_lshr_b32 s31, s30, 1"); a("s_lshl_b32 s31, s31, 2")
    a("v_add_u32 v1, s31, v1")
    a(f"v_bfe_u32 v2, v{LANE}, 3, 2"); a("v_lshlrev_b32 v2, 1, v2")
    a("v_xor_b32 v1, v1, v2")
    a(f"v_lshrrev_b32 v2, 2, v{LANE}"); a("v_lshlrev_b32 v2, 7, v2")
    a(f"v_and_b32 v3, 1, v{LANE}"); a("v_lshl_add_u32 v2, v3, 3, v2")
    a(f"v_lshl_add_u32 v{vR[0]}, v1, 4, v2")
    a("v_xor_b32 v1, 2, v1")
    a(f"v_lshl_add_u32 v{vR[1]}, v1, 4, v2")
    def wo_l(tag):
        l = []
        for i in range(8):
            pre = (f"s_lshl_b32 s{sB}, s{sCh}, 7\ns_add_u32 s{sB}, s{sB}, s{sWo0}\ns_add_u32 m0, s{sWb}, s69\n" if i == 0 else
                   f"s_add_u32 s{sB}, s{sB}, 9216\ns_add_u32 m0, m0, 1024\n")
            l.append(pre + f"buffer_load_dwordx4 v{vW}, s[72:75], s{sB} offen lds")
        l[-1] += "\n" + nxch
        return [(t, tag) for t in l]
    def o_read():
        a("s_and_b32 s31, s30, 1"); a(f"s_mul_i32 s31, s31, {24*1024}")
        a(f"v_add_u32 v{AF}, s31, v{vL}")
        lg = Lgkm(a)
        for f in range(24): lg.issue(f"ds_read_b128 {vr(OB+4*f,4)}, v{AF} offset:{1024*f}")
        lg.waitall()
    def op_half(t, off, cinit, fill, lds):
        lg = Lgkm(a); fill = list(fill); lds = list(lds)
        def rd(ks):
            for e in range(2): lg.issue(f"ds_read_b64_tr_b16 {vr(AF+4*(ks%4)+2*e,2)}, v{vR[t]} offset:{off+4096*ks+2048*e}", ks)
        for ks in range(4): rd(ks)
        nf = (len(fill) + 23) // 24
        for ks in range(8):
            lg.wait(ks)
            for qi in range(3):
                c = vr(OC + 12*t + 4*qi, 4)
                a(f"v_mfma_f32_16x16x32_bf16 {c}, {vr(AF+4*(ks%4),4)}, {vr(OB+32*qi+4*ks,4)}, {c if (ks or cinit) else 0}")
                if ks >= 1:
                    for x in fill[:nf + 1]: a(x)
                    fill = fill[nf + 1:]
                if qi != 2 and lds: vm(*lds.pop(0))
            if ks + 4 < 8: rd(ks + 4)
        for x in fill: a(x)
        for x in lds: vm(*x)
    def pack(t, dst): return [f"v_cvt_pk_bf16_f32 v{dst+4*qi+2*t+h}, v{OC+12*t+4*qi+2*h}, v{OC+12*t+4*qi+2*h+1}" for qi in range(3) for h in range(2)]
    def unpack(t, src):
        l = []
        for qi in range(3):
            for h in range(2):
                l += [f"v_lshlrev_b32 v{OC+12*t+4*qi+2*h}, 16, v{src+4*qi+2*t+h}", f"v_and_b32 v{OC+12*t+4*qi+2*h+1}, 0xffff0000, v{src+4*qi+2*t+h}"]
        return l
    shift = [f"v_mov_b64 {vr(PK+k,2)}, {vr(PK+12+k,2)}" for k in range(0, 96, 2)]
    def store_l(tag):
        l = [(f"s_mul_i32 s{sA}, s{sCr}, 12288\ns_add_u32 s{sA}, s{sA}, s{sPo}\n" if qi == 0 else "") +
             f"buffer_store_dwordx4 {vr(ST+4*qi,4)}, v{vL}, s[76:79], s{sA} offen offset:{1024*qi} sc1" for qi in range(3)]
        l[-1] += f"\ns_add_u32 s{sCr}, s{sCr}, 1\ns_cmp_eq_u32 s{sCr}, 9\ns_cselect_b32 s{sCr}, 0, s{sCr}"
        return [(t, tag) for t in l]
    def wave0(fn):
        l = a.newlabel("w0")
        a("s_cmp_lg_u32 s30, 0"); a(f"s_cbranch_scc1 {l}")
        fn()
        a.label(l)
    plain_until(33, 34)
    gsync(); dma(); o_read()
    a(f"s_mov_b32 s{sCr}, s{sCh}"); a(f"s_mov_b32 s{sWb}, 0"); a(f"s_mov_b32 s{sD2}, {WOB}")
    gsync(); vml(wo_l(("w", 0))); dma()
    gsync(); dma()
    def obody(k, issue=True):
        a(f"s_sub_u32 s{sWb}, {WOB}, s{sWb}")
        gsync(("w", k)); op_half(0, 0, False, shift, (wo_l(("w", k + 1)) if issue else []) + kv_l())
        gsync(); op_half(1, 0, False, pack(0, ST), kv_l())
        for x in pack(1, ST): a(x)
        for t in range(2): a(f"v_add_u32 v{vR[t]}, s{sD2}, v{vR[t]}")
        a(f"s_sub_u32 s{sD2}, 0, s{sD2}")
    run_loop(8, obody)
    obody(8, False)
    for t in range(2): a(f"v_add_u32 v{vR[t]}, {TB[0] - WOB}, v{vR[t]}")
    a(f"s_add_u32 s{sWo0}, s{sWo0}, {256*1152}")
    plain_until(61, 31)
    a(f"s_mov_b32 s{sWb}, {TB[0]}")
    gsync(); dma(); vml(wo_l(("t", 0)))
    for x in unpack(0, PK): a(x)
    plain_until(65)
    st["T"] = None
    a("s_waitcnt vmcnt(0)"); a("s_barrier"); tlog()
    for k in (1, 2):
        a(f"s_mov_b32 s{sWb}, {TB[k]}"); vml(wo_l(("t", k)))
    o_read()
    def tbody(k):
        f0 = (pack(1, ST) if k else []) + unpack(1, PK)
        a(f"s_mov_b32 s{sWb}, {TB[(k + 2) % 3]}")
        op_half(0, 0, True, f0, wo_l(("t", k + 2)) if 1 <= k and k + 2 < 9 else [])
        if k: vml(store_l("pb"))
        op_half(1, 0, True, shift + pack(0, ST) + unpack(0, PK), [])
        d = TB[(k + 1) % 3] - TB[k % 3]
        for t in range(2): a(f"v_add_u32 v{vR[t]}, {d & 0xffffffff}, v{vR[t]}")
        if k < 8:
            vwait({("t", k + 1)}); a("s_barrier")
    tbody(0)
    def tb3(it):
        for j in range(3): tbody(1 + 3 * it + j)
    run_loop(2, tb3)
    tbody(7); tbody(8)
    for x in pack(1, ST): a(x)
    vml(store_l("pb"))
    tlog()
    vRo = 232; vOo = 236; vFa = 240; vP = 242; RD = 96
    for s in range(4):
        a(f"s_lshl_b32 s31, s30, 6"); a(f"s_add_u32 s31, s31, {256*s}")
        a(f"v_add_u32 v1, s31, v{LANE}")
        a("s_mul_i32 s31, s70, 864")
        a("v_add_u32 v2, s31, v1")
        a("v_lshrrev_b32 v3, 6, v2")
        a("v_mul_u32_u24 v4, 171, v3"); a("v_lshrrev_b32 v4, 9, v4")
        a("v_mul_u32_u24 v5, 3, v4"); a("v_sub_u32 v5, v3, v5")
        a("v_and_b32 v6, 1, v4"); a("v_mul_u32_u24 v6, 3, v6"); a("v_add_u32 v5, v5, v6")
        a("v_and_b32 v6, 15, v2"); a("v_lshl_add_u32 v5, v5, 4, v6")
        a("v_mul_u32_u24 v5, 2304, v5")
        a("v_lshrrev_b32 v4, 1, v4"); a("v_lshl_add_u32 v5, v4, 6, v5")
        a("v_bfe_u32 v6, v2, 4, 2"); a("v_lshl_add_u32 v5, v6, 3, v5")
        a("v_lshlrev_b32 v2, 4, v2")
        a("v_cmp_gt_u32 vcc, 864, v1")
        a("v_mov_b32 v6, 0x10000000")
        a(f"v_cndmask_b32 v{vRo+s}, v6, v2, vcc")
        a(f"v_cndmask_b32 v{vOo+s}, v6, v5, vcc")
    a(f"s_mul_i32 s52, s71, {96*2304}"); a("s_mul_i32 s31, s84, 1152"); a("s_add_u32 s52, s52, s31")
    flag_addr(vFa)
    a("s_waitcnt vmcnt(0)"); a("s_barrier")
    def sigchk():
        a("s_lshl_b32 s89, s84, 4")
        a("s_add_u32 s31, s70, s89"); a("s_lshl_b64 exec, 1, s31")
        a(f"buffer_store_dword v{vF}, v{vFa}, s[56:59], 0 offen sc1")
        a("s_mov_b64 exec, -1")
        tlog()
        ls = a.newlabel("spin"); lo = a.newlabel("ok")
        a("s_mov_b32 s88, 0x8000")
        a.label(ls)
        a(f"buffer_load_dword v{vP}, v{vFa}, s[56:59], 0 offen sc1")
        a("s_waitcnt vmcnt(0)")
        a(f"v_cmp_eq_u32 vcc, v{vP}, v{vF}")
        a("s_sub_u32 s88, s88, 1"); a("s_cmp_eq_u32 s88, 0"); a(f"s_cbranch_scc1 {lo}")
        a("s_lshr_b32 s31, vcc_lo, s89"); a("s_and_b32 s31, s31, 0xff")
        a("s_cmp_eq_u32 s31, 0xff"); a(f"s_cbranch_scc1 {lo}")
        a("s_sleep 2"); a(f"s_branch {ls}")
        a.label(lo)
    wave0(sigchk)
    a("s_barrier")
    tlog()
    for j in range(8):
        a(f"s_mov_b32 s{sA}, {j*PART}")
        for s in range(4): vm(f"buffer_load_dwordx4 {vr(RD+16*j+4*s,4)}, v{vRo+s}, s[76:79], s{sA} offen sc1", ("re", j))
    for j in range(8):
        vwait({("re", j)})
        for k in range(16):
            src = RD + 16*j + k
            if j == 0:
                a(f"v_lshlrev_b32 v{2*k}, 16, v{src}"); a(f"v_and_b32 v{2*k+1}, 0xffff0000, v{src}")
            else:
                a(f"v_lshlrev_b32 v{32+2*(k%2)}, 16, v{src}"); a(f"v_and_b32 v{33+2*(k%2)}, 0xffff0000, v{src}")
                a(f"v_pk_add_f32 {vr(2*k,2)}, {vr(2*k,2)}, {vr(32+2*(k%2),2)}")
    for k in range(16): a(f"v_cvt_pk_bf16_f32 v{40+k}, v{2*k}, v{2*k+1}")
    for s in range(4):
        for h in range(2): vm(f"buffer_store_dwordx2 {vr(40+4*s+2*h,2)}, v{vOo+s}, s[80:83], s52 offen offset:{32*h}")
    if DIAG == 4:
        a("s_waitcnt vmcnt(0)")
        tlog()
        srd(56, 28, 512 << 20)
        a("s_lshl_b32 s31, s2, 2"); a("s_add_u32 s31, s31, s30"); a("s_lshl_b32 s31, s31, 10"); a(f"s_add_u32 s31, s31, {DIAG_OFF + (2<<20)}")
        a(f"v_lshlrev_b32 v1, 2, v{LANE}")
        a("buffer_store_dword v248, v1, s[56:59], s31 offen")
        a("buffer_store_dword v249, v1, s[56:59], s31 offen offset:256")
        a("buffer_store_dword v246, v1, s[56:59], s31 offen offset:512")
        a("buffer_store_dword v247, v1, s[56:59], s31 offen offset:768")
    a("s_endpgm")

    a.label("L_attn")
    if PRIO: a(f"s_setprio {PRIO}")
    NQ = 3
    O = 0; Q = 96; NEGM = 144; L = 156; vQ = 159; S = [160, 184]
    KB = [208 + 4 * f for f in range(8)]
    VB = KB[:6] + [244, 252]
    vAK, vAV, vST = 240, 241, 243
    T0, T1, T2 = 248, 249, 242
    sR, sCnt, sTHR, sSL, sWR, sD, sDk = 51, 52, 53, 64, 65, 66, 67
    a(f"s_mov_b32 s{sSL}, {SLOT}")
    a(f"s_mov_b32 s{sWR}, {(-(NSLOT-1)*SLOT) & 0xffffffff}")
    a(f"s_mov_b32 s{sR}, 0")
    a(f"s_mov_b32 s{sTHR}, {f2u(10.0)}")
    advs = (f"s_add_u32 s{sR}, s{sR}, 1\ns_cmp_eq_u32 s{sR}, {NSLOT}\ns_cselect_b32 s{sD}, s{sWR}, s{sSL}\ns_cselect_b32 s{sR}, 0, s{sR}", 3)
    advv = (f"v_add_u32 v{vAV}, s{sD}, v{vAV}", 1)
    advk = (f"v_add_u32 v{vAK}, s{sD}, v{vAK}", 1)
    a(f"v_and_b32 v1, 7, v{LANE}")
    a(f"v_mul_u32_u24 v1, 1056, v1")
    a(f"v_bfe_u32 v2, v{LANE}, 3, 1")
    a(f"v_lshl_add_u32 v1, v2, 8, v1")
    a(f"v_lshrrev_b32 v2, 4, v{LANE}")
    a(f"v_lshl_add_u32 v1, v2, 4, v1")
    a(f"v_add_u32 v{vAK}, {RING0}, v1")
    a(f"v_bfe_u32 v1, v{LANE}, 2, 3")
    a(f"v_mul_u32_u24 v1, 1056, v1")
    a(f"v_lshrrev_b32 v2, 5, v{LANE}")
    a(f"v_lshl_add_u32 v1, v2, 8, v1")
    a(f"v_and_b32 v2, 3, v{LANE}")
    a(f"v_lshl_add_u32 v1, v2, 3, v1")
    a(f"v_add_u32 v{vAV}, {RING0 + TILE}, v1")
    a(f"v_lshrrev_b32 v1, 4, v{LANE}")
    a(f"v_and_b32 v2, 15, v{LANE}")
    a(f"v_mul_u32_u24 v3, {QROW}, v2")
    a(f"v_lshl_add_u32 v3, v1, 4, v3")
    a(f"s_mul_i32 s31, s30, {48*QROW}")
    a(f"v_add_u32 v{vQ}, s31, v3")
    a("s_and_b32 s31, s30, 1"); a("s_mul_i32 s31, s31, 24576"); a("s_lshr_b32 s3, s30, 1"); a("s_lshl_b32 s3, s3, 12"); a("s_add_u32 s31, s31, s3")
    a(f"v_lshlrev_b32 v1, 4, v{LANE}")
    a(f"v_add_u32 v{vST}, s31, v1")
    zeroO = [(f"v_mov_b64 {vr(O+k,2)}, 0", 1) for k in range(0, 96, 2)]
    emit(zeroO)

    def sm_ops(Sb):
        ops = []
        for qi in range(NQ):
            s = Sb + 8 * qi; l = L + qi
            e = lambda k: (f"v_exp_f32 v{s+k}, v{s+k}", 2)
            ad = lambda k: (f"v_add_f32 v{l}, v{l}, v{s+k}", 1)
            c = lambda k: (f"v_cvt_pk_bf16_f32 v{s+k}, v{s+2*k}, v{s+2*k+1}", 1)
            ops += [e(0), e(1), ad(0), e(2), ad(1), e(3), c(0), e(4), ad(2), e(5), ad(3), e(6), c(1), ad(4), e(7), ad(5), c(2), ad(6), ad(7), c(3)]
        return ops
    def sm_split(Sb):
        ops = sm_ops(Sb); tot = sum(c for _, c in ops); acc = 0; k = 0
        while acc < tot * SMFRAC: acc += ops[k][1]; k += 1
        return ops[:k], ops[k:]
    def kread(lg, f, extra=0):
        kt, j = f // 4, f % 4
        lg.issue(f"ds_read_b128 {vr(KB[f],4)}, v{vAK} offset:{64*j+512*kt+extra}", ("k", f))
    def vread(lg, dt, e):
        lg.issue(f"ds_read_b64_tr_b16 {vr(VB[dt]+2*e,2)}, v{vAV} offset:{32*dt+512*e}", ("v", dt))
    def qk_items(lg, Sb, czero=False, vpost=True, kpost=True, kwait=False):
        posts = {}
        def post(pos, fn): posts.setdefault(min(pos, 8*NQ - 1), []).append(fn)
        if vpost:
            for pos, (dt, e) in zip((0, 1, 4, 7), ((6, 0), (6, 1), (7, 0), (7, 1))):
                post(pos, lambda dt=dt, e=e: vread(lg, dt, e))
            for dt in range(6):
                post(NQ * (dt + 1) - 1, lambda dt=dt: vread(lg, dt, 0))
                post(NQ * (dt + 1), lambda dt=dt: vread(lg, dt, 1))
        if kpost:
            post(NQ * 7 - 1, lambda: kread(lg, 6))
            post(NQ * 8 - 1, lambda: kread(lg, 7))
        items = []
        for f in range(8):
            kt, j = f // 4, f % 4
            for qi in range(NQ):
                pos = f * NQ + qi
                def it(f=f, kt=kt, j=j, qi=qi, pos=pos):
                    if kwait: lg.wait(("k", f))
                    d = vr(Sb + 8*qi + 4*kt, 4)
                    c = d if j else ("0" if czero else vr(NEGM + 4*qi, 4))
                    a(f"v_mfma_f32_16x16x32_bf16 {d}, {vr(KB[f],4)}, {vr(Q+16*qi+4*j,4)}, {c}")
                    for fn in posts.get(pos, []): fn()
                items.append((it, len(posts.get(pos, []))))
        return items
    def pv_items(lg, Pb, kpost=True, k67=False):
        items = []
        for dt in range(8):
            for qi in range(NQ):
                kp = None
                if kpost and dt < 6 and qi == NQ - 1: kp = dt
                if k67 and dt == 0 and qi < 2: kp = 6 + qi
                def it(dt=dt, qi=qi, lg=lg, kp=kp):
                    if dt == 0: lg.wait(("v", 2))
                    if dt == 3: lg.wait(("v", 5))
                    lg.wait(("v", dt))
                    o = vr(O + 32*qi + 4*dt, 4)
                    a(f"v_mfma_f32_16x16x32_bf16 {o}, {vr(VB[dt],4)}, {vr(Pb+8*qi,4)}, {o}")
                    if kp is not None: kread(lg, kp)
                items.append((it, 1 if kp is not None else 0))
        return items
    def xlane(op, r, t):
        return [(f"v_mov_b32 v{t}, v{r}", 1), (f"v_permlane16_swap_b32 v{t}, v{r}", 2), (f"{op} v{r}, v{r}, v{t}", 1),
                (f"v_mov_b32 v{t}, v{r}", 1), (f"v_permlane32_swap_b32 v{t}, v{r}", 2), (f"{op} v{r}, v{r}, v{t}", 1)]
    def rowmax(qi, Sb, r, t):
        s = Sb + 8*qi
        return [(f"v_max3_f32 v{r}, v{s}, v{s+1}, v{s+2}", 1), (f"v_max3_f32 v{r}, v{r}, v{s+3}, v{s+4}", 1),
                (f"v_max3_f32 v{r}, v{r}, v{s+5}, v{s+6}", 1), (f"v_max_f32 v{r}, v{r}, v{s+7}", 1)] + xlane("v_max_f32", r, t)
    def qread(lg):
        for qi in range(NQ):
            for j in range(4):
                lg.issue(f"ds_read_b128 {vr(Q+16*qi+4*j,4)}, v{vQ} offset:{16*QROW*qi + 64*j}", "q")
    rares = []
    def tick(par, split):
        Sc, Sp = S[par], S[1 - par]
        a("s_barrier")
        lg = Lgkm(a)
        h1c, _ = sm_split(Sc)
        _, h2p = sm_split(Sp)
        vals = [Sc + 8*qi + 4*kt + r for kt in range(2) for qi in range(NQ) for r in range(4)]
        mx = [(f"v_max_f32 v{T0}, v{vals[0]}, v{vals[1]}", 1)] + [(f"v_max3_f32 v{T0}, v{T0}, v{vals[k]}, v{vals[k+1]}", 1) for k in range(2, 24, 2)]
        interleave(a, qk_items(lg, Sc, kpost=not split), h2p)
        if split:
            lg.waitall(); a("s_barrier")
        pv = pv_items(lg, Sp, k67=split)
        interleave(a, pv[:KPRE], mx)
        lr = a.newlabel("rare"); lb = a.newlabel("rareb")
        a(f"v_cmp_lt_f32 vcc, s{sTHR}, v{T0}")
        a(f"s_cbranch_vccnz {lr}")
        lg2 = lg.clone()
        tailf = ([advv, (f"s_sub_u32 s{sD}, 0, s{sD}", 1)] if split else [advs, advv]) + h1c
        interleave(a, pv[KPRE:], tailf)
        a.label(lb)
        if split:
            a(f"v_add_u32 v{vAK}, s{sDk}, v{vAK}"); a(f"s_sub_u32 s{sDk}, 0, s{sDk}")
        else: emit([advk])
        a("s_waitcnt lgkmcnt(0)")
        def rare():
            a.label(lr)
            a("s_waitcnt lgkmcnt(0)")
            lg2.done = lg2.n
            for it, _ in pv_items(lg2, Sp, k67=split)[KPRE:]: it()
            a("s_nop 7")
            for qi in range(NQ):
                r, t = T0, T1
                emit(rowmax(qi, Sc, r, t))
                a(f"v_max_f32 v{r}, 0, v{r}")
                for k in range(4): a(f"v_sub_f32 v{NEGM+4*qi+k}, v{NEGM+4*qi+k}, v{r}")
                for k in range(8): a(f"v_sub_f32 v{Sc+8*qi+k}, v{Sc+8*qi+k}, v{r}")
                a(f"v_sub_f32 v{r}, 0, v{r}")
                a(f"v_exp_f32 v{r}, v{r}")
                a(f"v_mul_f32 v{L+qi}, v{L+qi}, v{r}")
                for k in range(0, 32, 2): a(f"v_pk_mul_f32 {vr(O+32*qi+k,2)}, {vr(O+32*qi+k,2)}, {vr(T0,2)} op_sel_hi:[1,0]")
            emit(tailf)
            a("s_nop 1")
            a(f"s_branch {lb}")
        rares.append(rare)
    def boundary(old, new, lg, kpost, startup=False, more=True, split=False):
        h2 = sm_split(S[1])[1] if old else []
        if new:
            interleave(a, qk_items(lg, S[0], czero=True, vpost=old, kpost=kpost and not split, kwait=startup), h2)
            if split:
                lg.waitall(); a("s_barrier")
        else:
            for dt in (6, 7, 0, 1, 2, 3, 4, 5):
                vread(lg, dt, 0); vread(lg, dt, 1)
            emit(h2)
        init = []
        if new:
            for qi in range(NQ):
                init += rowmax(qi, S[0], T0, T1)
                init += [(f"v_sub_f32 v{NEGM+4*qi+k}, 0, v{T0}", 1) for k in range(4)]
                init += [(f"v_sub_f32 v{S[0]+8*qi+k}, v{S[0]+8*qi+k}, v{T0}", 1) for k in range(8)]
        if old:
            lsum = []
            for qi in range(NQ): lsum += xlane("v_add_f32", L + qi, T2) + [(f"v_rcp_f32 v{L+qi}, v{L+qi}", 2)]
            interleave(a, pv_items(lg, S[1], kpost=kpost, k67=kpost and (split or not new)), lsum + init)
            for qi in range(NQ):
                a(f"v_mov_b32 v{T0}, v{L+qi}")
                for u in range(4):
                    o = O + 32*qi + 8*u
                    for k in range(0, 8, 2): a(f"v_pk_mul_f32 {vr(o+k,2)}, {vr(o+k,2)}, {vr(T0,2)} op_sel_hi:[1,0]")
                    for k in range(4): a(f"v_cvt_pk_bf16_f32 v{o+k}, v{o+2*k}, v{o+2*k+1}")
                    lg.issue(f"ds_write_b128 v{vST}, {vr(o,4)} offset:{8192*qi + 1024*u}")
        else:
            if kpost:
                for f in range(6): kread(lg, f)
            emit(init)
        if new:
            for qi in range(NQ): a(f"v_mov_b32 v{L+qi}, 0")
            emit(sm_split(S[0])[0])
        a("s_waitcnt lgkmcnt(0)")
        if old and more: emit(zeroO)
    def loop(split):
        lp = a.newlabel("loop")
        a(f"s_mov_b32 s{sCnt}, 15")
        a.label(lp)
        tick(1, split); tick(0, split)
        a(f"s_sub_u32 s{sCnt}, s{sCnt}, 1")
        a(f"s_cmp_lg_u32 s{sCnt}, 0")
        a(f"s_cbranch_scc1 {lp}")
        tick(1, split)

    sPH = 60
    a(f"s_mov_b32 s{sPH}, 0")
    for _ in range(10): a("s_barrier")
    a("s_barrier")
    lg = Lgkm(a); qread(lg)
    a("s_cmp_eq_u32 s33, 1")
    a("s_cbranch_scc1 L_typeB")
    lgA = lg.clone()
    for f in range(8): kread(lgA, f, TILE)
    boundary(False, True, lgA, True, startup=True)
    a.label("L_G")
    emit([advs, advv, advk])
    loop(False)
    a(f"s_cmp_eq_u32 s{sPH}, 1")
    a("s_cbranch_scc1 L_last")
    a(f"s_mov_b32 s{sPH}, 1")
    l2 = Lgkm(a); qread(l2); l2.waitall()
    a("s_barrier")
    boundary(True, True, Lgkm(a), True)
    a("s_branch L_G")
    a.label("L_last")
    a("s_barrier")
    boundary(True, False, Lgkm(a), False, more=False)
    a.label("L_end")
    a("s_endpgm")
    a.label("L_typeB")
    a(f"s_mov_b32 s{sD}, {(-2*SLOT) & 0xffffffff}")
    a("s_cmp_ge_u32 s30, 2")
    a("s_cbranch_scc1 L_pairB")
    lgB = lg.clone()
    for f in range(8): kread(lgB, f, TILE)
    a(f"v_add_u32 v{vAV}, {2*SLOT}, v{vAV}"); a(f"s_mov_b32 s{sDk}, {(-2*SLOT) & 0xffffffff}")
    a(f"v_add_u32 v{vAK}, {SLOT}, v{vAK}")
    a("s_waitcnt lgkmcnt(0)")
    a.label("L_startB")
    boundary(False, True, Lgkm(a), False)
    a("s_barrier")
    l2 = Lgkm(a)
    for f in range(8): kread(l2, f)
    l2.waitall()
    a(f"v_subrev_u32 v{vAK}, s{sDk}, v{vAK}")
    a.label("L_M")
    loop(True)
    a(f"s_cmp_eq_u32 s{sPH}, 1")
    a("s_cbranch_scc1 L_last")
    a(f"s_mov_b32 s{sPH}, 1")
    l2 = Lgkm(a); qread(l2); l2.waitall()
    a("s_barrier")
    boundary(True, True, Lgkm(a), True, split=True)
    emit([advv]); a(f"s_sub_u32 s{sD}, 0, s{sD}")
    a(f"v_add_u32 v{vAK}, s{sDk}, v{vAK}"); a(f"s_sub_u32 s{sDk}, 0, s{sDk}")
    a("s_branch L_M")
    a.label("L_pairB")
    lgB = lg.clone()
    for f in range(8): kread(lgB, f)
    a(f"v_add_u32 v{vAV}, {3*SLOT}, v{vAV}"); a(f"s_mov_b32 s{sDk}, {2*SLOT}")
    a(f"v_add_u32 v{vAK}, {2*SLOT}, v{vAK}")
    a("s_waitcnt lgkmcnt(0)")
    a("s_barrier")
    a("s_branch L_startB")
    for r in rares: r()

def build(DIAG=0, **kw):
    a = Asm()
    gen_main(a, DIAG=DIAG, **kw)
    a.pad()
    hdr = ("; @launch grid=(256,1,1) block=(512,1,1) lds=163840\n"
           '.amdgcn_target "amdgcn-amd-amdhsa--gfx950"\n.text\n')
    return hdr + a.text() + kernel_desc(NAME + "_kernel", 256)

if __name__ == "__main__":
    out = sys.argv[1] if len(sys.argv) > 1 else "k6.s"
    open(out, "w").write(build(DIAG=(4 if "diag4" in sys.argv else 0), EXP=sys.argv[2:]))
```
